```python
import torch

def _softmax(x, axis=-1):
    return torch.softmax(x, dim=axis)
def _gelu(x):
    return torch.nn.functional.gelu(x, approximate="tanh")
def _silu(x):
    return torch.nn.functional.silu(x)
def _sigmoid(x):
    return torch.sigmoid(x)
def _layernorm(x, axis=-1, eps=1e-5):
    m = x.mean(dim=axis, keepdim=True)
    v = x.var(dim=axis, keepdim=True, unbiased=False)
    return (x - m) / torch.sqrt(v + eps)
def _scatter_add(tgt, idx, src, axis=0):
    return tgt.clone().index_add_(axis, idx, src)
def _segment_sum(src, seg, n):
    out = torch.zeros((n,) + src.shape[1:], dtype=src.dtype)
    return out.index_add_(0, seg, src)
def _pad(x, pw):
    flat = tuple(v for pair in reversed(pw) for v in pair)
    return torch.nn.functional.pad(x, flat)

kernel_name = 'parallel_sum__softmax_full_mha__glu_gated_glu__prompt'

def setup_inputs():

    _w = (lambda a: (lambda t: t.to(torch.bfloat16) if t.is_floating_point() else t)(torch.as_tensor(a)))
    def _A_setup():
        B, S, D = 1, 2048, 1024
        return {
            "x": _w((lambda *s: torch.randn(*s, dtype=torch.bfloat16) * 0.05)(B, S, D)),
            "wqkv": _w((lambda *s: torch.randn(*s, dtype=torch.bfloat16) * 0.05)(D, 3 * D)),
            "wo": _w((lambda *s: torch.randn(*s, dtype=torch.bfloat16) * 0.05)(D, D)),
        }
    _A_in = _A_setup()

    def _B_setup():
        B, S, D, F = 1, 2048, 1024, 3584
        return {
            "x": _w((lambda *s: torch.randn(*s, dtype=torch.bfloat16) * 0.05)(B, S, D)),
            "w_gate": _w((lambda *s: torch.randn(*s, dtype=torch.bfloat16) * 0.05)(D, F)),
            "w_up": _w((lambda *s: torch.randn(*s, dtype=torch.bfloat16) * 0.05)(D, F)),
            "w_down": _w((lambda *s: torch.randn(*s, dtype=torch.bfloat16) * 0.05)(F, D)),
        }
    _B_in = _B_setup()

    return {
        "A_x": _A_in["x"],
        "A_wqkv": _A_in["wqkv"],
        "A_wo": _A_in["wo"],
        "B_x": _B_in["x"],
        "B_w_gate": _B_in["w_gate"],
        "B_w_up": _B_in["w_up"],
        "B_w_down": _B_in["w_down"],
    }

def reference(A_x, A_wqkv, A_wo, B_x, B_w_gate, B_w_up, B_w_down):
    def _A_ref(x, wqkv, wo):
        B, S, D = x.shape
        H = 32; Dh = D // H
        qkv = (lambda x, *d: x.permute(*d))((x @ wqkv).reshape(B, S, 3, H, Dh), 2, 0, 3, 1, 4)
        q, k, v = qkv[0], qkv[1], qkv[2]
        scale = Dh ** -0.5
        scores = torch.einsum("bhqd,bhkd->bhqk", q, k) * scale
        p = _softmax(scores, axis=-1)
        o = torch.einsum("bhqk,bhkd->bhqd", p, v)
        return (lambda x, *d: x.permute(*d))(o, 0, 2, 1, 3).reshape(B, S, D) @ wo

    def _B_ref(x, w_gate, w_up, w_down):
        g = torch.einsum("bsd,df->bsf", x, w_gate)
        u = torch.einsum("bsd,df->bsf", x, w_up)
        h = _sigmoid(g) * u
        return torch.einsum("bsf,fd->bsd", h, w_down)

    x = A_x
    xn = _layernorm(x, axis=-1)
    return x + _A_ref(xn, A_wqkv, A_wo) + _B_ref(xn, B_w_gate, B_w_up, B_w_down)
```

```python
import struct
LOG2E = 1.4426950408889634
import struct
def f2u(x): return struct.unpack('<I', struct.pack('<f', x))[0]

WS_Q = 0
WS_K = 4 << 20
WS_V = 8 << 20
WS_ACT = 12 << 20
ACT_TB = 288 * 1024
WS_BYTES = 268435456

class Asm:
    def __init__(s): s.L = []
    def e(s, x):
        if isinstance(x, (list, tuple)):
            for y in x: s.e(y)
        else: s.L.append("    " + x)
    def lab(s, x): s.L.append(x + ":")
    def raw(s, x): s.L.append(x)
    def text(s): return "\n".join(s.L) + "\n"

def vr(a, n=1): return f"v{a}" if n == 1 else f"v[{a}:{a+n-1}]"
def sr(a, n=1): return f"s{a}" if n == 1 else f"s[{a}:{a+n-1}]"
def mfma32(d, a, b, c=None):
    cs = vr(d, 16) if c is None else (c if isinstance(c, str) else vr(c, 16))
    return f"v_mfma_f32_32x32x16_bf16 {vr(d,16)}, {vr(a,4)}, {vr(b,4)}, {cs}"
def mfma16(d, a, b, c=None):
    cs = vr(d, 4) if c is None else (c if isinstance(c, str) else vr(c, 4))
    return f"v_mfma_f32_16x16x32_bf16 {vr(d,4)}, {vr(a,4)}, {vr(b,4)}, {cs}"

def weave(mf, fill, first=0):
    n = len(mf) - first
    out = []
    k = 0
    for i, m in enumerate(mf):
        out.append(m)
        if i >= first:
            tgt = (len(fill) * (i - first + 1) + n - 1) // n
            while k < tgt:
                out.append(fill[k]); k += 1
    return out

def srd(a, R, lo, nbytes):
    a.e([f"s_mov_b32 s{R}, s{lo}", f"s_and_b32 s{R+1}, s{lo+1}, 0xffff", f"s_mov_b32 s{R+2}, {nbytes}", f"s_mov_b32 s{R+3}, 0x00020000"])

def kernel_head(a, name):
    a.raw(f".globl {name}\n.p2align 8\n.type {name},@function")
    a.lab(name)

def kernel_desc(name, nv, ns=102):
    return f""".amdhsa_kernel {name}
  .amdhsa_next_free_vgpr {nv}
  .amdhsa_next_free_sgpr {ns}
  .amdhsa_accum_offset {nv}
  .amdhsa_group_segment_fixed_size 0
  .amdhsa_kernarg_size 80
  .amdhsa_user_sgpr_count 2
  .amdhsa_user_sgpr_kernarg_segment_ptr 1
  .amdhsa_system_sgpr_workgroup_id_x 1
.end_amdhsa_kernel
"""
```

```python
from common import *

AT_LDS = 65536 + 64

def gen_at(a):
    name = "at_kernel"
    sWS = 16
    sWave, sHead, sTB, sT0, sT1, sK, sV, sDst, sCnt, sMode, sStage, sKs, sVs, sK0 = range(20, 34)
    QF = 8
    KF = lambda p: 16 + 8 * p
    VF = lambda p: 32 + 8 * p
    PB = 48
    SS = lambda p: 56 + 16 * p
    OO = 88; NM = 104; LL = 120; SEL = 124
    VK = 2; VV = 3; VL = 1
    kernel_head(a, name)
    a.e(["s_cmp_ge_u32 s2, 256", "s_cbranch_scc1 at_exit",
         "s_load_dwordx2 s[12:13], s[0:1], 72",
         "v_lshrrev_b32 v1, 6, v0", "v_and_b32 v0, 63, v0",
         f"v_readfirstlane_b32 s{sWave}, v1",
         f"s_and_b32 s{sT0}, s2, 7", f"s_lshr_b32 s{sT1}, s2, 3",
         f"s_lshl_b32 s{sHead}, s{sT0}, 2", f"s_and_b32 s{sT0}, s{sT1}, 3", f"s_add_u32 s{sHead}, s{sHead}, s{sT0}",
         f"s_lshr_b32 s{sTB}, s{sT1}, 2", f"s_lshl_b32 s{sTB}, s{sTB}, 3", f"s_add_u32 s{sTB}, s{sTB}, s{sWave}",
         f"v_lshlrev_b32 v{VL}, 4, v0",
         f"s_lshl_b32 s{sK0}, s{sHead}, 17",
         f"s_lshl_b32 s{sDst}, s{sWave}, 10",
         f"s_mov_b32 s{sMode}, 0",
         "s_waitcnt lgkmcnt(0)"])
    srd(a, sWS, 12, WS_BYTES)
    a.e([f"s_lshl_b32 s{sT0}, s{sTB}, 11", f"s_add_u32 s{sT0}, s{sT0}, s{sK0}",
         f"buffer_load_dwordx4 {vr(QF,4)}, v{VL}, {sr(sWS,4)}, s{sT0} offen",
         f"buffer_load_dwordx4 {vr(QF+4,4)}, v{VL}, {sr(sWS,4)}, s{sT0} offen offset:1024",
         f"s_add_u32 s{sK0}, s{sK0}, {WS_K}"])
    a.e(["v_lshrrev_b32 v4, 5, v0", "v_lshlrev_b32 v4, 8, v4", "v_bfe_u32 v5, v0, 4, 1", "v_lshl_add_u32 v4, v5, 7, v4",
         "v_and_b32 v5, 1, v0", "v_lshl_add_u32 v4, v5, 6, v4", "v_bfe_u32 v5, v0, 2, 2", "v_lshl_add_u32 v4, v5, 4, v4",
         "v_bfe_u32 v5, v0, 1, 1", f"v_lshl_add_u32 v{VV}, v5, 3, v4",
         "v_lshrrev_b32 v4, 2, v0", "v_xor_b32 v4, v4, v0", "v_bfe_u32 v4, v4, 2, 1", "v_add_u32 v4, -1, v4",
         f"v_and_b32 v{SEL}, 0x3f803f80, v4", f"v_mov_b32 v{SEL+1}, v{SEL}", f"v_mov_b32 v{SEL+2}, v{SEL}", f"v_mov_b32 v{SEL+3}, v{SEL}"])
    def dma(slot):
        return [[f"s_add_u32 m0, s{sDst}, {slot*16384}", "s_nop 0", f"buffer_load_dwordx4 v{VL}, {sr(sWS,4)}, s{sKs} offen lds"],
                [f"s_add_u32 m0, s{sDst}, {slot*16384+8192}", "s_nop 0", f"buffer_load_dwordx4 v{VL}, {sr(sWS,4)}, s{sVs} offen lds"]]
    adv = [f"s_cmp_lt_u32 s{sStage}, 16", f"s_cselect_b32 s{sKs}, s{sK}, 0x7f000000", f"s_add_u32 s{sVs}, s{sKs}, {WS_V-WS_K}",
           f"s_add_u32 s{sK}, s{sK}, 8192", f"s_add_u32 s{sStage}, s{sStage}, 1"]
    def kread(p, T):
        o = (T >> 2) * 16384 + (T & 3) * 2048
        return [f"ds_read_b128 {vr(KF(p)+4*s,4)}, v{VL} offset:{o+1024*s}" for s in range(2)]
    def vread(p, T):
        o = (T >> 2) * 16384 + 8192 + (T & 3) * 2048
        return [f"ds_read_b64_tr_b16 {vr(VF(p)+4*s+2*h,2)}, v{VV} offset:{o+(4*s+2*h)*256}" for s in range(2) for h in range(2)]
    a.lab("at_start")
    a.e([f"s_add_u32 s{sK}, s{sK0}, s{sDst}", f"s_mov_b32 s{sStage}, 0"])
    for st in range(3):
        a.e(adv); a.e(dma(st))
    for r in range(16): a.e(f"v_mov_b32 v{OO+r}, 0")
    for r in range(4): a.e([f"v_mov_b32 v{LL+r}, 0", f"v_mov_b32 v{PB+4+r}, 0", f"v_mov_b32 v{VF(1)+4+r}, 0"])
    a.e(["s_waitcnt vmcnt(4)", "s_barrier"])
    a.e(kread(0, 0) + kread(1, 1) + vread(0, 0))
    a.e([f"s_cmp_lg_u32 s{sMode}, 0", "s_cbranch_scc1 at_havemax", "s_waitcnt lgkmcnt(6)",
         mfma32(SS(0), KF(0), QF, "0"), mfma32(SS(0), KF(0) + 4, QF + 4), "s_nop 7", "s_nop 3"])
    S = SS(0)
    a.e([f"v_max3_f32 v4, v{S}, v{S+1}, v{S+2}"] + [f"v_max3_f32 v4, v4, v{S+3+2*i}, v{S+4+2*i}" for i in range(6)] + [f"v_max_f32 v4, v4, v{S+15}",
         "v_mov_b32 v5, v4", "s_nop 1", "v_permlane32_swap_b32 v4, v5", "v_max_f32 v4, v4, v5"])
    for r in range(16): a.e(f"v_sub_f32 v{NM+r}, 0, v4")
    a.lab("at_havemax")
    a.e(["s_waitcnt lgkmcnt(6)", "s_nop 1", mfma32(SS(0), KF(0), QF, NM), mfma32(SS(0), KF(0) + 4, QF + 4), "s_nop 7", "s_nop 3",
         f"s_mov_b32 s{sCnt}, 4"])
    a.raw(".p2align 6")
    a.lab("at_loop")
    for t in range(16):
        p = t & 1; q = 1 - p
        S = SS(p)
        ex = [f"v_exp_f32 v{S+i}, v{S+i}" for i in range(16)]
        cv = [f"v_cvt_pk_bf16_f32 v{PB+i}, v{S+2*i}, v{S+2*i+1}" for i in range(8)]
        M5 = mfma32(OO, VF(q) + 4, PB + 4); M6 = mfma16(LL, SEL, PB + 4)
        M1 = mfma32(SS(q), KF(q), QF, NM); M2 = mfma32(SS(q), KF(q) + 4, QF + 4)
        M3 = mfma32(OO, VF(p), PB); M4 = mfma16(LL, SEL, PB)
        rd = kread(p, (t + 2) & 15) + vread(q, (t + 1) & 15)
        sync = []; dm = [[], []]
        if t & 3 == 2:
            sync = ["s_waitcnt vmcnt(2)", "s_barrier"] + adv
            dm = dma(((t >> 2) + 3) & 3)
        a.e([M5, "s_waitcnt lgkmcnt(0)"] + sync + ex[0:2] + rd[0:2] + ex[2:4] + [M1] + rd[2:4] + ex[4:6] + rd[4:6] + ex[6:8] + [M6] + cv[0:4] + dm[0] + ex[8:9] + [M2]
            + ex[9:13] + [M3] + dm[1] + ex[13:16] + [M4] + cv[4:8] + ["s_nop 0"])
        if t == 15:
            a.e([f"s_sub_u32 s{sCnt}, s{sCnt}, 1", f"s_cmp_lg_u32 s{sCnt}, 0", "s_cbranch_scc1 at_loop"])
        else: a.e("s_nop 0")
    a.e([mfma32(OO, VF(1) + 4, PB + 4), mfma16(LL, SEL, PB + 4), "s_waitcnt vmcnt(0) lgkmcnt(0)", "s_nop 7", "s_nop 3"])
    a.e([f"v_max3_f32 v4, |v{OO}|, |v{OO+1}|, |v{OO+2}|"] + [f"v_max3_f32 v4, v4, |v{OO+3+2*i}|, |v{OO+4+2*i}|" for i in range(6)] + [f"v_max_f32 v4, v4, |v{OO+15}|",
         f"v_cmp_nlt_f32 vcc, v{LL}, {hex(f2u(2.0**24))}" if False else f"v_mov_b32 v5, {hex(f2u(2.0**24))}",
         f"v_cmp_nlt_f32 vcc, v{LL}, v5", f"v_mov_b32 v5, {hex(f2u(2.0**126))}", "v_cmp_nlt_f32 s[34:35], v4, v5",
         "s_nop 1", "s_or_b64 vcc, vcc, s[34:35]", "s_cmp_lg_u64 vcc, 0", f"s_cselect_b32 s{sT0}, 1, 0",
         f"v_mov_b32 v5, s{sT0}", f"s_lshl_b32 s{sT1}, s{sWave}, 2", f"s_add_u32 s{sT1}, s{sT1}, 65536", f"v_mov_b32 v6, s{sT1}",
         "ds_write_b32 v6, v5", "s_waitcnt lgkmcnt(0)", "s_barrier",
         "v_mov_b32 v6, 65536", f"ds_read_b128 {vr(KF(0),4)}, v6", f"ds_read_b128 {vr(KF(0)+4,4)}, v6 offset:16", "s_waitcnt lgkmcnt(0)",
         f"v_or3_b32 v5, v{KF(0)}, v{KF(0)+1}, v{KF(0)+2}", f"v_or3_b32 v5, v5, v{KF(0)+3}, v{KF(0)+4}", f"v_or3_b32 v5, v5, v{KF(0)+5}, v{KF(0)+6}",
         f"v_or_b32 v5, v5, v{KF(0)+7}", "s_nop 0", f"v_readfirstlane_b32 s{sT0}, v5", "s_nop 1",
         f"s_andn2_b32 s{sT0}, s{sT0}, s{sMode}", f"s_cmp_lg_u32 s{sT0}, 0", "s_cbranch_scc1 at_fallback"])
    a.e([f"v_rcp_f32 v4, v{LL}", "s_nop 0"])
    for r in range(16): a.e(f"v_mul_f32 v{OO+r}, v4, v{OO+r}")
    for r in range(8): a.e(f"v_cvt_pk_bf16_f32 v{PB+r}, v{OO+2*r}, v{OO+2*r+1}")
    a.e([f"s_mul_i32 s{sT0}, s{sTB}, {ACT_TB}", f"s_lshl_b32 s{sT1}, s{sHead}, 11", f"s_add_u32 s{sT0}, s{sT0}, s{sT1}",
         f"s_add_u32 s{sT0}, s{sT0}, {WS_ACT + 224*1024}",
         f"buffer_store_dwordx4 {vr(PB,4)}, v{VL}, {sr(sWS,4)}, s{sT0} offen",
         f"buffer_store_dwordx4 {vr(PB+4,4)}, v{VL}, {sr(sWS,4)}, s{sT0} offen offset:1024",
         "s_endpgm"])
    a.lab("at_fallback")
    S = SS(0)
    a.e([f"s_mov_b32 s{sMode}, 1", f"s_mov_b32 s{sCnt}, 64", f"s_mov_b32 s{sT0}, s{sK0}", "v_mov_b32 v4, 0xff800000"])
    a.lab("at_fb_loop")
    a.e([f"buffer_load_dwordx4 {vr(KF(0),4)}, v{VL}, {sr(sWS,4)}, s{sT0} offen",
         f"buffer_load_dwordx4 {vr(KF(0)+4,4)}, v{VL}, {sr(sWS,4)}, s{sT0} offen offset:1024",
         "s_waitcnt vmcnt(0)",
         mfma32(S, KF(0), QF, "0"), mfma32(S, KF(0) + 4, QF + 4), "s_nop 7", "s_nop 3"])
    a.e([f"v_max3_f32 v4, v4, v{S+2*i}, v{S+1+2*i}" for i in range(8)])
    a.e([f"s_add_u32 s{sT0}, s{sT0}, 2048", f"s_sub_u32 s{sCnt}, s{sCnt}, 1", f"s_cmp_lg_u32 s{sCnt}, 0", "s_cbranch_scc1 at_fb_loop",
         "v_mov_b32 v5, v4", "s_nop 1", "v_permlane32_swap_b32 v4, v5", "v_max_f32 v4, v4, v5"])
    for r in range(16): a.e(f"v_sub_f32 v{NM+r}, 0, v4")
    a.e(["s_barrier", "s_branch at_start"])
    a.lab("at_exit")
    a.e("s_endpgm")
    return kernel_desc(name, 128), f"; @launch kernel={name} grid=(256,1,1) block=(512,1,1) lds={AT_LDS}"
```

```python
from common import *

FIN_ST = 49152
FIN_LDS = 3 * FIN_ST

def gen_fin(a):
    name = "fin_kernel"
    sX, sWD, sWO, sOUT, sWS, sW = 16, 20, 24, 28, 32, 36
    sWave, sTh, sKq, sMt, sNt, sT0, sT1, sA, sWo, sSt, sCnt, sDa, sDw, sAs, sWs, sOut = range(40, 56)
    ACC = lambda i: 64 + 16 * i
    AF = lambda p, ci: 16 + 16 * p + 4 * ci
    BF = lambda p, ti: 24 + 16 * p + 4 * ti
    VL = 1; VW0 = 2; VW1 = 3
    VA = lambda sl, ci: 48 + 2 * sl + ci
    VB = lambda sl, ti: 54 + 2 * sl + ti
    VO = 60
    kernel_head(a, name)
    a.e(["s_cmp_ge_u32 s2, 256", "s_cbranch_scc1 fin_exit",
         "s_load_dwordx2 s[4:5], s[0:1], 0", "s_load_dwordx2 s[6:7], s[0:1], 16", "s_load_dwordx4 s[8:11], s[0:1], 48", "s_load_dwordx2 s[12:13], s[0:1], 72",
         "v_lshrrev_b32 v1, 6, v0", "v_and_b32 v0, 63, v0",
         f"v_readfirstlane_b32 s{sWave}, v1",
         f"s_lshr_b32 s{sT1}, s2, 3",
         f"s_bfe_u32 s{sMt}, s2, 0x20001", f"s_lshl_b32 s{sMt}, s{sMt}, 2", f"s_and_b32 s{sT0}, s{sT1}, 3", f"s_add_u32 s{sMt}, s{sMt}, s{sT0}",
         f"s_and_b32 s{sNt}, s2, 1", f"s_lshl_b32 s{sNt}, s{sNt}, 3", f"s_lshr_b32 s{sT0}, s{sT1}, 2", f"s_add_u32 s{sNt}, s{sNt}, s{sT0}",
         f"s_lshr_b32 s{sTh}, s{sWave}, 2", f"s_and_b32 s{sKq}, s{sWave}, 3",
         f"v_lshlrev_b32 v{VL}, 4, v0",
         "s_waitcnt lgkmcnt(0)"])
    srd(a, sX, 4, 2048 * 2048)
    srd(a, sWO, 6, 1024 * 2048)
    srd(a, sWD, 8, 3584 * 2048)
    srd(a, sOUT, 10, 2048 * 2048)
    srd(a, sWS, 12, WS_BYTES)
    a.e([f"s_mov_b32 s{sW+3}, 0x00020000"])
    a.e([f"s_lshl_b32 s{sT0}, s{sMt}, 2", f"s_lshr_b32 s{sT1}, s{sWave}, 1", f"s_add_u32 s{sT0}, s{sT0}, s{sT1}",
         f"s_mul_i32 s{sA}, s{sT0}, {ACT_TB}", f"s_and_b32 s{sT1}, s{sWave}, 1", f"s_lshl_b32 s{sT1}, s{sT1}, 12",
         f"s_add_u32 s{sA}, s{sA}, s{sT1}", f"s_add_u32 s{sA}, s{sA}, {WS_ACT}",
         f"s_lshl_b32 s{sWo}, s{sNt}, 7", f"s_lshl_b32 s{sT1}, s{sWave}, 15", f"s_add_u32 s{sWo}, s{sWo}, s{sT1}",
         f"s_lshl_b32 s{sDa}, s{sWave}, 12", f"s_lshl_b32 s{sDw}, s{sWave}, 11", f"s_add_u32 s{sDw}, s{sDw}, 32768",
         "v_lshrrev_b32 v4, 3, v0", "v_and_b32 v5, 7, v0", "v_bfe_u32 v6, v0, 4, 1", "v_lshlrev_b32 v6, 2, v6", "v_xor_b32 v5, v5, v6",
         "v_lshlrev_b32 v4, 11, v4", f"v_lshl_add_u32 v{VW0}, v5, 4, v4", f"v_add_u32 v{VW1}, 16384, v{VW0}",
         f"s_mov_b32 s{sSt}, 0"])
    adv = [f"s_cmp_lt_u32 s{sSt}, 28",
           f"s_cselect_b32 s{sW}, s{sWD}, s{sWO}", f"s_cselect_b32 s{sW+1}, s{sWD+1}, s{sWO+1}", f"s_cselect_b32 s{sW+2}, s{sWD+2}, s{sWO+2}",
           f"s_cselect_b32 s{sT0}, 0, {28*262144}", f"s_sub_u32 s{sWs}, s{sWo}, s{sT0}",
           f"s_cmp_lt_u32 s{sSt}, 36", f"s_cselect_b32 s{sAs}, s{sA}, 0x7f000000",
           f"s_add_u32 s{sA}, s{sA}, 8192", f"s_add_u32 s{sWo}, s{sWo}, 262144", f"s_add_u32 s{sSt}, s{sSt}, 1"]
    def dma(sl):
        o = [[f"s_add_u32 m0, s{sDa}, {sl*FIN_ST}", "s_nop 0", f"buffer_load_dwordx4 v{VL}, {sr(sWS,4)}, s{sAs} offen lds"]]
        o += [[f"buffer_load_dwordx4 v{VL}, {sr(sWS,4)}, s{sAs} offen offset:{1024*i} lds"] for i in range(1, 4)]
        o += [[f"s_add_u32 m0, s{sDw}, {sl*FIN_ST}", "s_nop 0", f"buffer_load_dwordx4 v{VW0}, {sr(sW,4)}, s{sWs} offen lds"]]
        o += [[f"s_add_u32 m0, s{sDw}, {sl*FIN_ST+1024}", "s_nop 0", f"buffer_load_dwordx4 v{VW1}, {sr(sW,4)}, s{sWs} offen lds"]]
        return o
    a.e([f"s_lshl_b32 s{sOut}, s{sMt}, 18", f"s_lshl_b32 s{sT0}, s{sTh}, 17", f"s_add_u32 s{sOut}, s{sOut}, s{sT0}",
         f"s_and_b32 s{sT0}, s{sKq}, 1", f"s_lshl_b32 s{sT0}, s{sT0}, 16", f"s_add_u32 s{sOut}, s{sOut}, s{sT0}",
         f"s_lshl_b32 s{sT0}, s{sNt}, 7", f"s_add_u32 s{sOut}, s{sOut}, s{sT0}",
         f"s_lshr_b32 s{sT0}, s{sKq}, 1", f"s_lshl_b32 s{sT0}, s{sT0}, 6", f"s_add_u32 s{sOut}, s{sOut}, s{sT0}",
         "v_and_b32 v4, 31, v0", "v_lshlrev_b32 v4, 11, v4", "v_lshrrev_b32 v5, 5, v0",
         "v_lshl_add_u32 v6, v5, 3, v4", f"v_lshl_add_u32 v{VO}, v5, 4, v4"])
    for i in range(4): a.e(f"buffer_load_dwordx2 {vr(8+2*i,2)}, v6, {sr(sX,4)}, s{sOut} offen offset:{16*i}")
    for st in range(3):
        a.e(adv); a.e(dma(st))
    a.e(["v_bfe_u32 v4, v0, 2, 2",
         "v_lshl_add_u32 v6, v5, 2, v4", "v_lshlrev_b32 v6, 7, v6",
         "v_bfe_u32 v7, v0, 4, 1", "v_lshlrev_b32 v7, 1, v7", "v_bfe_u32 v61, v0, 1, 1", "v_add_u32 v7, v7, v61",
         "v_lshrrev_b32 v4, 1, v4", "v_lshlrev_b32 v4, 2, v4", "v_xor_b32 v7, v7, v4",
         "v_lshl_add_u32 v6, v7, 4, v6", "v_and_b32 v7, 1, v0", "v_lshl_add_u32 v6, v7, 3, v6",
         f"s_lshr_b32 s{sT0}, s{sKq}, 1", f"s_lshl_b32 s{sT0}, s{sT0}, 6", f"v_xor_b32 v6, s{sT0}, v6",
         f"s_lshl_b32 s{sT0}, s{sKq}, 11", f"s_add_u32 s{sT0}, s{sT0}, 32768", f"v_add_u32 v6, s{sT0}, v6",
         f"s_lshl_b32 s{sT0}, s{sTh}, 14", f"s_and_b32 s{sT1}, s{sKq}, 1", f"s_lshl_b32 s{sT1}, s{sT1}, 13", f"s_add_u32 s{sT0}, s{sT0}, s{sT1}",
         f"s_lshl_b32 s{sT1}, s{sKq}, 10", f"s_add_u32 s{sT0}, s{sT0}, s{sT1}", f"v_add_u32 v7, s{sT0}, v{VL}"])
    for sl in range(3):
        a.e([f"v_add_u32 v{VA(sl,0)}, {sl*FIN_ST}, v6", f"v_xor_b32 v{VA(sl,1)}, 64, v{VA(sl,0)}",
             f"v_add_u32 v{VB(sl,0)}, {sl*FIN_ST}, v7", f"v_xor_b32 v4, 8192, v7", f"v_add_u32 v{VB(sl,1)}, {sl*FIN_ST}, v4"])
    for r in range(ACC(1), ACC(4)): a.e(f"v_mov_b32 v{r}, 0")
    a.e("s_waitcnt vmcnt(18)")
    for i in range(8):
        a.e([f"v_lshlrev_b32 v{ACC(0)+2*i}, 16, v{8+i}", f"v_and_b32 v{ACC(0)+2*i+1}, 0xffff0000, v{8+i}"])
    def reads(p, sl, hi):
        o = [f"ds_read_b128 {vr(BF(p,ti),4)}, v{VB(sl,ti)} offset:{4096*hi}" for ti in range(2)]
        o += [f"ds_read_b64_tr_b16 {vr(AF(p,ci)+2*hf,2)}, v{VA(sl,ci)} offset:{(64*hi+8*hf)*128}" for ci in range(2) for hf in range(2)]
        return o
    a.e(["s_waitcnt vmcnt(12)", "s_barrier"])
    a.e(reads(0, 0, 0))
    a.e(f"s_mov_b32 s{sCnt}, 12")
    a.raw(".p2align 6")
    a.lab("fin_loop")
    for sl in range(3):
        m0 = [mfma32(ACC(2*ci+ti), AF(0, ci), BF(0, ti)) for ci in range(2) for ti in range(2)]
        m1 = [mfma32(ACC(2*ci+ti), AF(1, ci), BF(1, ti)) for ci in range(2) for ti in range(2)]
        r1 = reads(1, sl, 1); r0 = reads(0, (sl + 1) % 3, 0)
        d = dma(sl)
        a.e(["s_waitcnt lgkmcnt(0)", m0[0]] + r1[0:2] + [m0[1]] + r1[2:4] + [m0[2]] + r1[4:6] + [m0[3]] + adv)
        a.e(["s_waitcnt lgkmcnt(0)", m1[0], "s_waitcnt vmcnt(6)", "s_barrier"] + r0[0:2] + d[0:2] + [m1[1]] + r0[2:4] + d[2:4] + [m1[2]] + r0[4:6] + d[4:6] + [m1[3]])
    a.e([f"s_sub_u32 s{sCnt}, s{sCnt}, 1", f"s_cmp_lg_u32 s{sCnt}, 0", "s_cbranch_scc1 fin_loop"])
    a.e(["s_waitcnt vmcnt(0) lgkmcnt(0)", "s_barrier"])
    for i in range(1, 4):
        a.e([f"s_xor_b32 s{sT0}, s{sWave}, {i}", f"s_mul_i32 s{sT0}, s{sT0}, 12288", f"s_add_u32 s{sT0}, s{sT0}, {(i-1)*4096}", f"v_add_u32 v{4+i}, s{sT0}, v{VL}"])
    a.e([f"s_mul_i32 s{sT0}, s{sWave}, 12288", f"v_add_u32 v4, s{sT0}, v{VL}", "s_nop 7"])
    for i in range(1, 4):
        for q in range(4): a.e(f"ds_write_b128 v{4+i}, {vr(ACC(i)+4*q,4)} offset:{1024*q}")
    a.e(["s_waitcnt lgkmcnt(0)", "s_barrier"])
    for i in range(1, 4):
        for q in range(4): a.e(f"ds_read_b128 {vr(ACC(i)+4*q,4)}, v4 offset:{(i-1)*4096+1024*q}")
    for i in range(1, 4):
        a.e(f"s_waitcnt lgkmcnt({4*(3-i)})")
        for r in range(16): a.e(f"v_add_f32 v{ACC(0)+r}, v{ACC(0)+r}, v{ACC(i)+r}")
    for r in range(8): a.e(f"v_cvt_pk_bf16_f32 v{16+r}, v{ACC(0)+2*r}, v{ACC(0)+2*r+1}")
    a.e("s_nop 1")
    for ii in range(2):
        a.e([f"v_permlane32_swap_b32 v{16+4*ii}, v{18+4*ii}", f"v_permlane32_swap_b32 v{17+4*ii}, v{19+4*ii}"])
    for ii in range(2):
        a.e(f"buffer_store_dwordx4 {vr(16+4*ii,4)}, v{VO}, {sr(sOUT,4)}, s{sOut} offen offset:{32*ii}")
    a.e("s_endpgm")
    a.lab("fin_exit")
    a.e("s_endpgm")
    return kernel_desc(name, 128), f"; @launch kernel={name} grid=(256,1,1) block=(512,1,1) lds={FIN_LDS}"
```

```python
import re, sys

def regs_of(tok):
    tok = tok.strip()
    neg = tok.lstrip('-|').rstrip('|')
    m = re.fullmatch(r'([vsa])(\d+)', neg)
    if m: return [(m.group(1), int(m.group(2)))]
    m = re.fullmatch(r'([vsa])\[(\d+):(\d+)\]', neg)
    if m: return [(m.group(1), i) for i in range(int(m.group(2)), int(m.group(3)) + 1)]
    if neg == 'vcc': return [('s', 106), ('s', 107)]
    if neg == 'vcc_lo': return [('s', 106)]
    if neg == 'vcc_hi': return [('s', 107)]
    if neg == 'exec': return [('s', 126), ('s', 127)]
    if neg == 'm0': return [('s', 124)]
    return []

TRANS = ('v_exp_f32', 'v_log_f32', 'v_rcp_f32', 'v_rsq_f32', 'v_sqrt_f32', 'v_sin_f32', 'v_cos_f32')

class I:
    def __init__(s, line, ln):
        s.line = line; s.ln = ln
        p = line.split(None, 1)
        s.op = p[0]
        rest = p[1] if len(p) > 1 else ''
        rest = re.sub(r'\s+op_sel.*', '', rest)
        ops = [o.strip() for o in rest.split(',')]
        if ops:
            last = ops[-1].split()
            s.mods = last[1:] if last else []
            ops[-1] = last[0] if last else ''
        s.ops = ops
        op = s.op
        s.mfma = op.startswith('v_mfma') or op.startswith('v_smfmac')
        s.valu = op.startswith('v_') and not s.mfma
        s.ds = op.startswith('ds_')
        s.vmem = op.startswith('buffer_') or op.startswith('global_')
        s.salu = op.startswith('s_')
        s.trans = any(op.startswith(t) for t in TRANS)
        s.dot = op.startswith('v_dot')
        s.dpp = 'dpp' in op or any(m.startswith(('row_', 'quad_perm', 'wave_')) for m in s.mods)
        s.w = []; s.r = []; s.srcc = []; s.ab = []
        R = [regs_of(o) for o in ops]
        s.ws = 1
        if op == 's_nop': s.ws = int(ops[0], 0) + 1
        if s.mfma:
            s.w = R[0]; s.ab = R[1] + R[2]
            if op.startswith('v_smfmac'):
                s.srcc = R[0]; s.ab += R[3]
            else: s.srcc = R[3]
            s.r = s.ab + s.srcc
            s.passes = 8 if '32x32' in op else 4
        elif s.valu:
            if op.startswith('v_cmp'):
                s.w = R[0] if not op.startswith('v_cmpx') else regs_of('exec'); s.r = sum(R[1:], [])
                if op.startswith('v_cmpx'): s.r = sum(R, [])
            elif op.startswith('v_permlane') and 'swap' in op:
                s.w = R[0] + R[1]; s.r = R[0] + R[1]
            elif re.match(r'v_(add|sub|subrev)_co_u32', op):
                s.w = R[0] + R[1]; s.r = sum(R[2:], [])
            elif re.match(r'v_(addc|subb)_co_u32', op):
                s.w = R[0] + R[1]; s.r = sum(R[2:], [])
            else:
                s.w = R[0]; s.r = sum(R[1:], [])
                if op.startswith(('v_fmac', 'v_dot2c', 'v_mac', 'v_pk_fmac')): s.r += R[0]
                if op.startswith('v_cndmask') and len(ops) == 3: s.r += regs_of('vcc')
        elif s.ds:
            if op.startswith('ds_read') or op.startswith('ds_bpermute') or op.startswith('ds_permute') or '_rtn' in op or op.startswith('ds_swizzle'):
                s.w = R[0]; s.r = sum(R[1:], [])
            else: s.r = sum(R, [])
        elif s.vmem:
            s.lds = 'lds' in s.mods or '_lds_' in op
            if 'load' in op and not s.lds:
                s.w = R[0]; s.r = sum(R[1:], [])
            elif 'atomic' in op and 'sc0' in s.mods:
                s.w = R[0]; s.r = sum(R, [])
            else: s.r = sum(R, [])
            if s.lds: s.r += regs_of('m0')
            s.widestore = ('store' in op) and (op.endswith('x3') or op.endswith('x4'))
            if s.widestore:
                s.sdata = R[0] if op.startswith('buffer') else R[1]
        elif s.salu:
            if op.startswith(('s_cmp', 's_cbranch', 's_branch', 's_waitcnt', 's_nop', 's_barrier', 's_endpgm', 's_setprio', 's_sleep', 's_bitcmp')):
                s.r = sum(R, [])
            else:
                s.w = R[0] if R else []; s.r = sum(R[1:], [])

def need(a, b):
    n = 0; why = ''
    A_w = set(a.w); B_r = set(b.r); B_w = set(b.w)
    def upd(k, w):
        nonlocal n, why
        if k > n: n = k; why = w
    if a.mfma:
        p = a.passes
        if b.mfma:
            if A_w & set(b.ab): upd(12 if p == 8 else 8, 'mfma D->A/B')
            if A_w & set(b.srcc):
                if not (a.w == b.srcc and a.passes == b.passes): upd(10 if p == 8 else 6, 'mfma D->overlap C')
            elif A_w & B_w: upd(10 if p == 8 else 6, 'mfma WAW?')
        elif b.valu or b.ds or b.vmem:
            if A_w & (B_r | B_w): upd(12 if p == 8 else 8, 'mfma D->valu/mem')
        if b.valu and set(a.srcc) & B_w: upd(7 if p == 8 else 3, 'mfma C WAR')
    if a.valu:
        vw = {x for x in A_w if x[0] in 'va'}; sw = {x for x in A_w if x[0] == 's'}
        if b.mfma and vw & B_r: upd(3 if a.dot else 2, 'valu->mfma')
        if a.trans and b.valu and not b.trans and vw & B_r: upd(1, 'trans')
        if a.trans and (b.ds or b.vmem) and vw & B_r: upd(1, 'trans->mem')
        if a.dot and (b.valu or b.ds or b.vmem):
            if b.op == a.op:
                if vw & set(sum([regs_of(o) for o in b.ops[1:3]], [])): upd(3, 'dot->dot AB')
            elif vw & (B_r | B_w): upd(3, 'dot->other')
        if b.valu and b.op.startswith('v_permlane') and vw & B_r: upd(2, 'valu->permlane')
        if b.valu and b.dpp and vw & B_r: upd(2, 'valu->dpp')
        if b.op.startswith(('v_readlane', 'v_readfirstlane')) and vw & B_r: upd(1, 'valu->readlane')
        if sw:
            if b.vmem and sw & B_r: upd(5, 'valu sgpr->vmem')
            if b.valu and sw & B_r: upd(2, 'valu sgpr->valu')
            if b.salu and sw & B_r: upd(1, 'valu sgpr->salu(pad)')
            if ('s', 126) in sw:
                if b.mfma: upd(4, 'exec->mfma')
                if b.valu and b.dpp: upd(5, 'exec->dpp')
                if b.op.startswith(('v_readlane', 'v_readfirstlane', 'v_permlane')): upd(4, 'exec->lane')
    if a.salu and ('s', 124) in A_w and (b.vmem and getattr(b, 'lds', False)): upd(1, 'm0->dma')
    if a.vmem and getattr(a, 'widestore', False):
        if set(a.sdata) & B_w: upd(2 if b.valu else 1, 'store WAR')
    return n, why

def scan(seq, errs):
    for i, b in enumerate(seq):
        d = 0
        for j in range(i - 1, max(-1, i - 24), -1):
            a = seq[j]
            n, why = need(a, b)
            if n > d:
                errs.add((a.ln, b.ln, why, n, d, a.line, b.line))
            d += a.ws
            if d >= 20: break

def lint(text):
    ins = []; labels = {}
    for ln, raw in enumerate(text.split('\n'), 1):
        l = raw.split(';')[0].strip()
        if not l or l.startswith('.') and not l.endswith(':'): continue
        if l.endswith(':'):
            labels[l[:-1]] = len(ins); continue
        ins.append(I(l, ln))
    errs = set()
    seg = []
    for x in ins:
        seg.append(x)
        if x.op in ('s_branch', 's_endpgm'):
            scan(seg, errs); seg = []
    scan(seg, errs)
    for i, x in enumerate(ins):
        if x.op.startswith(('s_cbranch', 's_branch')):
            t = labels.get(x.ops[0])
            if t is None: continue
            lo = i
            while lo > 0 and i - lo < 24 and ins[lo - 1].op not in ('s_branch', 's_endpgm'): lo -= 1
            hi = t
            while hi < len(ins) - 1 and hi - t < 24 and ins[hi].op not in ('s_branch', 's_endpgm'): hi += 1
            scan(ins[lo:i + 1] + ins[t:hi + 1], errs)
    return sorted(errs)

if __name__ == '__main__':
    e = lint(open(sys.argv[1]).read())
    for x in e: print("HAZARD L%d->L%d %s need %d have %d\n    %s\n    %s" % x)
    print(len(e), "hazards")
```

```python
import sys, math

from common import *

G1_WST = 20480
G1_XR = 3 * G1_WST
G1_XST = 32768
G1_LDS = G1_XR + 3 * G1_XST

def gen_g1(a):
    name = "g1_kernel"
    ACC = lambda b, tb: 96 + (b * 2 + tb) * 16
    AF = lambda p, b: 16 + p * 20 + b * 4
    BF = lambda p, tb: 56 + p * 8 + tb * 4
    CS = 72; ST = 77; VA = 81; VB0 = 86; VBT = 87; VD = 88
    sX, sWQ, sWG, sWU, sGU, sWS = 16, 20, 24, 28, 32, 36
    sWave, sMw, sNw, sMt, sNt, sP, sIsA, sF0 = 40, 41, 42, 43, 44, 45, 46, 47
    sQ, sG, sWdst, sRd, sWdel, sT0, sT1 = 48, 49, 50, 51, 52, 53, 60
    sXk, sXbase, sXfree, sXr, sXdel, sCnt, sOnes, sXs, sMw1k, sXdst = 54, 55, 56, 57, 61, 58, 59, 62, 63, 64
    kernel_head(a, name)
    a.e(["s_cmp_ge_u32 s2, 256", "s_cbranch_scc1 g1_exit",
         "s_load_dwordx4 s[4:7], s[0:1], 0", "s_load_dwordx4 s[8:11], s[0:1], 32", "s_load_dwordx2 s[12:13], s[0:1], 72",
         "v_lshrrev_b32 v1, 6, v0", "v_and_b32 v0, 63, v0",
         f"v_readfirstlane_b32 s{sWave}, v1",
         f"s_and_b32 s{sT0}, s2, 7", f"s_lshr_b32 s{sT1}, s2, 3",
         f"s_lshl_b32 s{sNt}, s{sT0}, 2", f"s_and_b32 s{sT0}, s{sT1}, 3", f"s_add_u32 s{sNt}, s{sNt}, s{sT0}",
         f"s_lshr_b32 s{sMt}, s{sT1}, 2",
         f"s_lshr_b32 s{sP}, s{sNt}, 1",
         f"s_xor_b32 s{sIsA}, s{sNt}, s{sP}", f"s_and_b32 s{sIsA}, s{sIsA}, 1",
         f"s_mul_i32 s{sF0}, s{sP}, 224",
         f"s_lshl_b32 s{sT0}, s{sIsA}, 5", f"s_add_u32 s{sT0}, s{sT0}, 96",
         f"s_bitcmp1_b32 s{sNt}, 0", f"s_cselect_b32 s{sT0}, s{sT0}, 0", f"s_add_u32 s{sF0}, s{sF0}, s{sT0}",
         f"s_and_b32 s{sMw}, s{sWave}, 3", f"s_lshr_b32 s{sNw}, s{sWave}, 2",
         f"s_lshl_b32 s{sMw1k}, s{sMw}, 10",
         f"s_mov_b32 s{sOnes}, 0x3f803f80",
         "v_bfe_u32 v2, v0, 2, 2", "v_lshrrev_b32 v3, 5, v0", "v_bfe_u32 v4, v0, 4, 1", "v_bfe_u32 v5, v0, 1, 1",
         "v_and_b32 v6, 1, v0", "v_lshlrev_b32 v6, 3, v6",
         "v_lshl_add_u32 v7, v3, 3, v2",
         "s_waitcnt lgkmcnt(0)"])
    srd(a, sX, 4, 2048 * 2048)
    srd(a, sWQ, 6, 1024 * 6144)
    srd(a, sWG, 8, 1024 * 7168)
    srd(a, sWU, 10, 1024 * 7168)
    srd(a, sWS, 12, WS_BYTES)
    a.e([f"s_cmp_lt_u32 s{sMw}, 2", f"s_cselect_b32 s{sGU}, s{sWG}, s{sWU}", f"s_cselect_b32 s{sGU+1}, s{sWG+1}, s{sWU+1}",
         f"s_mov_b32 s{sGU+2}, {1024*7168}", f"s_mov_b32 s{sGU+3}, 0x00020000"])
    a.e(["v_and_b32 v8, 31, v0", "v_bfe_u32 v9, v0, 1, 3", "v_xor_b32 v9, v9, v3", "v_lshlrev_b32 v9, 4, v9",
         "v_lshl_add_u32 v9, v8, 7, v9", f"s_lshl_b32 s{sT0}, s{sMw}, 13", f"s_add_u32 s{sT0}, s{sT0}, {G1_XR}",
         f"v_add_u32 v{VB0}, s{sT0}, v9",
         f"s_mov_b32 s{sRd}, 0", f"s_mov_b32 s{sXr}, 0", f"s_mov_b32 s{sCnt}, 16"])
    a.e([f"s_add_u32 s{sT0}, s{sMw}, s{sNw}", f"s_and_b32 s{sT0}, s{sT0}, 1",
         f"s_lshl_b32 s{sT1}, s{sNw}, 1", f"s_add_u32 s{sT0}, s{sT0}, s{sT1}",
         f"s_lshl_b32 s{sT1}, s{sIsA}, 2", f"s_add_u32 s{sT0}, s{sT0}, s{sT1}"])
    for v in range(1, 8):
        a.e([f"s_cmp_eq_u32 s{sT0}, {v}", f"s_cbranch_scc1 g1_v{v}"])

    def variant(isA, nw, sig):
        V = isA * 4 + nw * 2 + sig
        if isA: S0, SG, RO_G, RO_U = 256, 192, 8192, 14336
        else: S0, SG, RO_G, RO_U = 128, 256, 4096, 12288
        nq = 4 if isA else 2
        if nw == 0: blocks = [('q', i) for i in range(nq)] + [('g', j) for j in range(5 - nq)]
        else: blocks = [('g', j) for j in range(5 - nq, 10 - nq)]
        stride = [S0 if k == 'q' else SG for k, _ in blocks]
        a.lab(f"g1_v{V}")
        def slot_decode(dst, S, base_s, xor_s, gstride, kind):
            o = [f"v_add_u32 v10, {base_s}, v0"]
            if S == 192:
                o += ["v_mul_u32_u24 v11, 43691, v10", "v_lshrrev_b32 v11, 19, v11", "v_mul_u32_u24 v12, 12, v11", "v_sub_u32 v12, v10, v12"]
            elif S == 256:
                o += ["v_lshrrev_b32 v11, 4, v10", "v_and_b32 v12, 15, v10", "v_and_b32 v13, 3, v11", "v_lshlrev_b32 v13, 2, v13", "v_xor_b32 v12, v12, v13"]
            else:
                o += ["v_lshrrev_b32 v11, 3, v10", "v_and_b32 v12, 7, v10", "v_bfe_u32 v13, v11, 1, 1", "v_lshlrev_b32 v13, 2, v13", "v_xor_b32 v12, v12, v13"]
            if xor_s is not None: o += [f"v_xor_b32 v12, {xor_s}, v12"]
            o += [f"v_mul_u32_u24 v11, {gstride}, v11"]
            if kind == 'qk':
                o += ["v_lshrrev_b32 v13, 3, v12", "v_lshl_add_u32 v11, v13, 11, v11", "v_and_b32 v12, 7, v12"]
            o += [f"v_lshl_add_u32 v{dst}, v12, 4, v11"]
            return o
        if nw == 0:
            a.e([f"s_lshl_b32 s{sT0}, s{sMw}, 6"])
            if isA:
                plan = [('q', 0), ('q', 256), ('g', 0), ('gu', None), ('u', 128)]
            else:
                plan = [('q', 0), ('g', 0), ('g', 256), ('u', 0), ('u', 256)]
            for i, (k, sb) in enumerate(plan):
                if k == 'gu':
                    a.e([f"s_cmp_lt_u32 s{sMw}, 2", f"s_cselect_b32 s{sT1}, 384, 0", f"s_add_u32 s{sT1}, s{sT1}, s{sT0}", f"s_sub_u32 s{sT1}, s{sT1}, 128",
                         f"s_cmp_lt_u32 s{sMw}, 2", f"s_cselect_b32 s{sWdel}, 0, 2"])
                    a.e(slot_decode(VD + i, SG, f"s{sT1}", f"s{sWdel}", 7168, 'g'))
                else:
                    a.e([f"s_add_u32 s{sT1}, s{sT0}, {sb}"])
                    if k == 'q': a.e(slot_decode(VD + i, S0, f"s{sT1}", None, 6144, 'qk' if isA else 'v'))
                    else: a.e(slot_decode(VD + i, SG, f"s{sT1}", 2 if k == 'u' else None, 7168, 'g'))
            srds = [{'q': sWQ, 'g': sWG, 'u': sWU, 'gu': sGU}[k] for k, _ in plan]
            soffs = [sQ if k == 'q' else sG for k, _ in plan]
            a.e([f"s_lshl_b32 s{sQ}, s{sP}, 7"] + ([] if isA else [f"s_add_u32 s{sQ}, s{sQ}, 4096"]) + [f"s_lshl_b32 s{sG}, s{sF0}, 1"])
            def wdma(i):
                return [f"s_add_u32 m0, s{sWdst}, {4096*i}", "s_nop 0", f"buffer_load_dwordx4 v{VD+i}, {sr(srds[i],4)}, s{soffs[i]} offen lds"]
            wadv = [f"s_add_u32 s{sQ}, s{sQ}, {32*6144}", f"s_add_u32 s{sG}, s{sG}, {32*7168}"]
            for st in range(3):
                a.e(f"s_add_u32 s{sWdst}, s{sMw1k}, {st*G1_WST}")
                for i in range(5): a.e(wdma(i))
                a.e(wadv)
        else:
            for i in range(4):
                a.e(["v_lshrrev_b32 v10, 3, v0", f"v_add_u32 v10, {8*i}, v10", "v_bfe_u32 v11, v10, 1, 3", "v_and_b32 v12, 7, v0",
                     "v_xor_b32 v12, v12, v11", "v_lshlrev_b32 v10, 11, v10", f"v_lshl_add_u32 v{VD+i}, v12, 4, v10"])
            a.e([f"s_lshl_b32 s{sXbase}, s{sMt}, 19", f"s_lshl_b32 s{sT0}, s{sMw}, 16", f"s_add_u32 s{sXbase}, s{sXbase}, s{sT0}",
                 f"s_lshl_b32 s{sMw1k}, s{sMw}, 12", f"s_add_u32 s{sMw1k}, s{sMw1k}, {G1_XR}"])
            def xdma(i):
                return [f"s_add_u32 m0, s{sXdst}, {1024*i}", "s_nop 0", f"buffer_load_dwordx4 v{VD+i}, {sr(sX,4)}, s{sXs} offen lds"]
            for q in range(5):
                su, hf = q >> 1, q & 1
                a.e([f"s_add_u32 s{sXdst}, s{sMw1k}, {su*G1_XST + hf*16384}", f"s_add_u32 s{sXs}, s{sXbase}, {su*128 + hf*262144}"])
                for i in range(4): a.e(xdma(i))
            a.e([f"s_mov_b32 s{sXk}, 256", f"s_mov_b32 s{sXfree}, {2*G1_XST}"])
        for b, (k, idx) in enumerate(blocks):
            S = stride[b]
            if k == 'q':
                o = ["v_lshl_add_u32 v10, v4, 1, v5", f"v_add_u32 v10, {4*idx}, v10"]
            else:
                o = [f"v_add_u32 v10, {2*idx}, v5", "v_lshlrev_b32 v11, 1, v4", "v_xor_b32 v10, v10, v11"]
            if S == 256: o += ["v_lshlrev_b32 v11, 2, v2", "v_xor_b32 v10, v10, v11"]
            elif S == 128: o += ["v_lshrrev_b32 v11, 1, v2", "v_lshlrev_b32 v11, 2, v11", "v_xor_b32 v10, v10, v11"]
            o += ["v_lshl_add_u32 v10, v10, 4, v6", f"v_mul_u32_u24 v11, {S}, v7", "v_add_u32 v10, v10, v11"]
            if k == 'g': o += [f"v_mul_u32_u24 v11, {RO_U-RO_G}, v4", f"v_add3_u32 v{VA+b}, v10, v11, s{sT0}"]
            else: o += [f"v_mov_b32 v{VA+b}, v10"]
            if k == 'g': a.e(f"s_mov_b32 s{sT0}, {RO_G}")
            a.e(o)
        for r in range(96, 256): a.e(f"v_mov_b32 v{r}, 0")
        for r in range(CS, CS + 9): a.e(f"v_mov_b32 v{r}, 0")
        def areads(p, s):
            o = []
            for b in range(5):
                for half in range(2):
                    o.append(f"ds_read_b64_tr_b16 {vr(AF(p,b)+2*half,2)}, v{VA+b} offset:{(16*s+4*half)*stride[b]}")
            return o
        def breads(p, reg):
            return [f"ds_read_b128 {vr(BF(p,tb),4)}, v{reg} offset:{4096*tb}" for tb in range(2)]
        a.e([f"s_waitcnt vmcnt({10 if nw == 0 else 12})", "s_barrier"])
        a.e(breads(0, VB0) + areads(0, 0))
        a.raw(".p2align 6")
        a.lab(f"g1_loop{V}")
        for sp in range(4):
            p = sp & 1; s = sp & 1; odd = sp >> 1
            mf = [mfma32(ACC(b, tb), AF(p, b), BF(p, tb)) for b in range(5) for tb in range(2)]
            if (s ^ sig) == 0:
                val = [f"v_dot2c_f32_bf16 v{CS+b}, s{sOnes}, v{AF(p,b)+r}" for r in range(4) for b in range(5)]
            else:
                val = []
                for r in range(4):
                    for tb in range(2):
                        val += [f"v_dot2c_f32_bf16 v{ST+2*tb}, s{sOnes}, v{BF(p,tb)+r}", f"v_dot2c_f32_bf16 v{ST+2*tb+1}, v{BF(p,tb)+r}, v{BF(p,tb)+r}"]
            a.e("s_waitcnt lgkmcnt(0)")
            if s == 0:
                pre = [f"v_xor_b32 v{VBT}, {(sp+1)<<5}, v{VB0}"]
                rd = breads(1 - p, VBT) + areads(1 - p, 1)
                a.e(mf[0]); a.e(pre)
                fill = []
                for g in range(9):
                    fill.append(rd[2*g:2*g+2] + val[2*g:2*g+2])
                fill.append(val[18:])
                body = []
                for g in range(9): body += [fill[g], mf[g+1]]
                body.append(fill[9])
                a.e(body)
            else:
                sal = [f"s_add_u32 s{sT0}, s{sRd}, {G1_WST}", f"s_cmp_eq_u32 s{sT0}, {3*G1_WST}", f"s_cselect_b32 s{sT0}, 0, s{sT0}",
                       f"s_sub_u32 s{sWdel}, s{sT0}, s{sRd}"]
                if nw == 0: sal += [f"s_add_u32 s{sWdst}, s{sRd}, s{sMw1k}"]
                sal += [f"s_mov_b32 s{sRd}, s{sT0}"]
                if odd:
                    sal += [f"s_add_u32 s{sT0}, s{sXr}, {G1_XST}", f"s_cmp_eq_u32 s{sT0}, {3*G1_XST}", f"s_cselect_b32 s{sT0}, 0, s{sT0}",
                            f"s_sub_u32 s{sXdel}, s{sT0}, s{sXr}"]
                    if nw == 1: sal += [f"s_mov_b32 s{sXfree}, s{sXr}", f"s_add_u32 s{sXk}, s{sXk}, 128"]
                    sal += [f"s_mov_b32 s{sXr}, s{sT0}"]
                if nw == 1:
                    hf = 1 - odd
                    sal += [f"s_add_u32 s{sXdst}, s{sXfree}, s{sMw1k}"] + ([f"s_add_u32 s{sXdst}, s{sXdst}, 16384"] if hf else [])
                    sal += [f"s_add_u32 s{sXs}, s{sXbase}, s{sXk}"] + ([f"s_add_u32 s{sXs}, s{sXs}, 262144"] if hf else [])
                    sal += [f"s_cmp_lt_u32 s{sXk}, 2048", f"s_cselect_b32 s{sXs}, s{sXs}, 0x7f000000"]
                upd = [f"v_add_u32 v{VA+b}, s{sWdel}, v{VA+b}" for b in range(5)]
                if odd: upd = [f"v_add_u32 v{VB0}, s{sXdel}, v{VB0}"] + upd; breg = VB0
                else: upd = [f"v_xor_b32 v{VBT}, {(sp+1)<<5}, v{VB0}"] + upd; breg = VBT
                rd = breads(1 - p, breg) + areads(1 - p, 0)
                a.e(mf[0]); a.e(sal); a.e(upd); a.e(mf[1])
                if nw == 0: a.e("s_waitcnt vmcnt(5)")
                elif odd: a.e("s_waitcnt vmcnt(8)")
                a.e("s_barrier")
                dm = [wdma(i) for i in range(5)] + [wadv] if nw == 0 else [xdma(i) for i in range(4)]
                body = []
                for g in range(8):
                    f = rd[2*g:2*g+2] + val[2*g:2*g+2] + (val[16+g:17+g] if g < 4 else [])
                    if 2 <= g < 2 + len(dm): f = f + dm[g-2]
                    body += [f, mf[g+2]]
                a.e(body)
        a.e([f"s_sub_u32 s{sCnt}, s{sCnt}, 1", f"s_cmp_lg_u32 s{sCnt}, 0", f"s_cbranch_scc1 g1_loop{V}"])
        if sig == 0: a.e(f"s_branch g1_epi{V>>1}")
        else: epilogue(isA, nw, blocks)

    def epilogue(isA, nw, blocks):
        a.lab(f"g1_epi{isA*2+nw}")
        a.e(["s_waitcnt vmcnt(0) lgkmcnt(0)", "s_barrier",
             f"s_mul_i32 s{sT0}, s{sWave}, 2304", "v_lshlrev_b32 v1, 2, v0", f"v_add_u32 v8, s{sT0}, v1"])
        for i in range(9): a.e(f"ds_write_b32 v8, v{CS+i} offset:{256*i}")
        a.e([f"s_xor_b32 s{sT0}, s{sWave}, 1", f"s_mul_i32 s{sT0}, s{sT0}, 2304", f"v_add_u32 v9, s{sT0}, v1",
             f"s_xor_b32 s{sT0}, s{sWave}, 4", f"s_mul_i32 s{sT0}, s{sT0}, 2304", f"v_add_u32 v10, s{sT0}, v1",
             "s_waitcnt lgkmcnt(0)", "s_barrier"])
        for i in range(5): a.e(f"ds_read_b32 v{16+i}, v9 offset:{256*i}")
        for i in range(4): a.e(f"ds_read_b32 v{21+i}, v10 offset:{256*(5+i)}")
        a.e("s_waitcnt lgkmcnt(0)")
        for i in range(9): a.e(f"v_add_f32 v{CS+i}, v{CS+i}, v{16+i}")
        for i in range(4): a.e(f"v_mov_b32 v{16+i}, v{ST+i}")
        a.e("s_nop 1")
        for i in range(4): a.e(f"v_permlane32_swap_b32 v{16+i}, v{ST+i}")
        for i in range(4): a.e(f"v_add_f32 v{ST+i}, v{ST+i}, v{16+i}")
        for tb in range(2):
            su, sq = ST + 2 * tb, ST + 2 * tb + 1
            B = BF(0, tb)
            a.e([f"v_mul_f32 v{su}, {hex(f2u(1/1024))}, v{su}",
                 f"v_mul_f32 v{sq}, {hex(f2u(1/1024))}, v{sq}",
                 f"v_fma_f32 v{sq}, -v{su}, v{su}, v{sq}",
                 f"v_max_f32 v{sq}, 0, v{sq}",
                 f"v_cvt_pk_bf16_f32 v{B}, -v{su}, -v{su}",
                 f"v_cvt_pk_bf16_f32 v{sq}, v{sq}, v{sq}",
                 f"v_and_b32 v{B+1}, 0xffff, v{B}",
                 f"v_and_b32 v{sq}, 0xffff0000, v{sq}",
                 f"v_add_f32 v{sq}, {hex(f2u(1e-5))}, v{sq}",
                 f"v_cvt_pk_bf16_f32 v{sq}, v{sq}, v{sq}",
                 f"v_and_b32 v{sq}, 0xffff0000, v{sq}",
                 f"v_sqrt_f32 v{sq}, v{sq}",
                 f"v_mov_b32 v{B+2}, 0", f"v_mov_b32 v{B+3}, 0",
                 f"v_cvt_pk_bf16_f32 v{sq}, v{sq}, v{sq}",
                 f"v_and_b32 v{12+tb}, 0xffff0000, v{sq}",
                 f"v_rcp_f32 v{14+tb}, v{12+tb}"])
        for b in range(5):
            A = AF(0, b); c = CS + b
            a.e([f"v_cvt_pk_bf16_f32 v{A+2}, v{c}, v{c}", f"v_and_b32 v{A+2}, 0xffff0000, v{A+2}",
                 f"v_sub_f32 v{c}, v{c}, v{A+2}",
                 f"v_cvt_pk_bf16_f32 v{A}, v{A+2}, v{c}", f"v_and_b32 v{A+3}, 0xffff0000, v{A}",
                 f"v_sub_f32 v{c}, v{c}, v{A+3}",
                 f"v_cvt_pk_bf16_f32 v{A+1}, v{c}, 0", f"v_mov_b32 v{A+2}, 0", f"v_mov_b32 v{A+3}, 0"])
        a.e("s_nop 1")
        for b in range(5):
            for tb in range(2): a.e(mfma32(ACC(b, tb), AF(0, b), BF(0, tb)))
        a.e(["v_lshlrev_b32 v1, 4, v0",
             "v_bfe_u32 v8, v0, 2, 3", "v_lshlrev_b32 v8, 8, v8", "v_lshl_add_u32 v8, v3, 6, v8", "v_and_b32 v9, 3, v0", "v_lshl_add_u32 v8, v9, 4, v8"])
        for tb in range(2):
            a.e([f"v_mul_f32 v{10+tb}, {hex(f2u(-LOG2E))}, v{14+tb}", f"v_mul_f32 v{4+tb}, {hex(f2u(LOG2E * 32 ** -0.5))}, v{14+tb}"])
        a.e([f"s_lshl_b32 s{sT0}, s{sMt}, 3", f"s_lshl_b32 s{sT1}, s{sMw}, 1", f"s_add_u32 s{sT0}, s{sT0}, s{sT1}",
             f"s_lshl_b32 s{sQ}, s{sT0}, 11", f"s_lshl_b32 s{sT1}, s{sP}, 18", f"s_add_u32 s{sQ}, s{sQ}, s{sT1}",
             f"s_mul_i32 s{sG}, s{sT0}, {ACT_TB}", f"s_lshl_b32 s{sT1}, s{sF0}, 6", f"s_add_u32 s{sG}, s{sG}, s{sT1}",
             f"s_add_u32 s{sG}, s{sG}, {WS_ACT}"])
        tmp = [16, 24, 32, 40, 48, 56, 64]
        ti = 0
        for b, (k, idx) in enumerate(blocks):
            for tb in range(2):
                D = ACC(b, tb)
                T = tmp[ti % len(tmp)]; ti += 1
                if k == 'q':
                    isq = isA and idx < 2
                    sc = 4 + tb if isq else 14 + tb
                    for r in range(16): a.e(f"v_mul_f32 v{D+r}, v{sc}, v{D+r}")
                    for r in range(8): a.e(f"v_cvt_pk_bf16_f32 v{T+r}, v{D+2*r}, v{D+2*r+1}")
                    base = (WS_Q if isq else WS_K) if isA else WS_V
                    a.e(f"s_add_u32 s{sT0}, s{sQ}, {base + (idx & 1) * 131072}")
                    for s in range(2):
                        if isA: a.e(f"buffer_store_dwordx4 {vr(T+4*s,4)}, v1, {sr(sWS,4)}, s{sT0} offen offset:{2048*tb+1024*s}")
                        else: a.e(f"buffer_store_dwordx4 {vr(T+4*s,4)}, v8, {sr(sWS,4)}, s{sT0} offen offset:{2048*tb+128*s}")
                else:
                    for r in range(8): a.e(f"v_mul_f32 v{D+r}, v{10+tb}, v{D+r}")
                    for r in range(8): a.e(f"v_exp_f32 v{D+r}, v{D+r}")
                    for r in range(8): a.e(f"v_fma_f32 v{D+r}, v{D+r}, v{12+tb}, v{12+tb}")
                    for r in range(8): a.e(f"v_rcp_f32 v{D+r}, v{D+r}")
                    for r in range(8): a.e(f"v_mul_f32 v{D+r}, v{D+r}, v{D+8+r}")
                    for r in range(4): a.e(f"v_cvt_pk_bf16_f32 v{T+r}, v{D+2*r}, v{D+2*r+1}")
                    a.e(f"s_add_u32 s{sT0}, s{sG}, {tb*ACT_TB + idx*1024}")
                    a.e(f"buffer_store_dwordx4 {vr(T,4)}, v1, {sr(sWS,4)}, s{sT0} offen")
        a.e("s_endpgm")

    for isA in (0, 1):
        for nw in (0, 1):
            for sig in (0, 1): variant(isA, nw, sig)
    a.lab("g1_exit")
    a.e("s_endpgm")
    return kernel_desc(name, 256), f"; @launch kernel={name} grid=(256,1,1) block=(512,1,1) lds={G1_LDS}"

from gen_at import gen_at
from gen_fin import gen_fin

def build(kernels):
    a = Asm()
    descs = []; launches = []
    for g in kernels:
        d, l = g(a)
        descs.append(d); launches.append(l)
    hdr = "; generated by work/gen.py\n" + "\n".join(launches) + '\n.amdgcn_target "amdgcn-amd-amdhsa--gfx950"\n.text\n'
    return hdr + a.text() + '.section .rodata,"a"\n' + "".join(".p2align 6\n" + d for d in descs)

if __name__ == "__main__":
    out = sys.argv[1] if len(sys.argv) > 1 else "parallel_sum__softmax_full_mha__glu_gated_glu__prompt.s"
    txt = build([gen_g1, gen_at, gen_fin])
    open(out, "w").write(txt)
    from lint import lint
    for x in lint(txt): print("HAZARD L%d->L%d %s need %d have %d\n    %s\n    %s" % x)
    print("wrote", out, len(txt), "bytes")
```

```python
import struct
LOG2E = 1.4426950408889634
import struct
def f2u(x): return struct.unpack('<I', struct.pack('<f', x))[0]

WS_Q = 0
WS_K = 4 << 20
WS_V = 8 << 20
WS_ACT = 12 << 20
ACT_TB = 144 * 1024
WS_XN = 32 << 20
WS_FLAG = 40 << 20
WS_WP = 48 << 20
WS_BYTES = 268435456

class Asm:
    def __init__(s): s.L = []
    def e(s, x):
        if isinstance(x, (list, tuple)):
            for y in x: s.e(y)
        else: s.L.append("    " + x)
    def lab(s, x): s.L.append(x + ":")
    def raw(s, x): s.L.append(x)
    def text(s): return "\n".join(s.L) + "\n"

def vr(a, n=1): return f"v{a}" if n == 1 else f"v[{a}:{a+n-1}]"
def sr(a, n=1): return f"s{a}" if n == 1 else f"s[{a}:{a+n-1}]"
def mfma32(d, a, b, c=None):
    cs = vr(d, 16) if c is None else (c if isinstance(c, str) else vr(c, 16))
    return f"v_mfma_f32_32x32x16_bf16 {vr(d,16)}, {vr(a,4)}, {vr(b,4)}, {cs}"
def mfma16(d, a, b, c=None):
    cs = vr(d, 4) if c is None else (c if isinstance(c, str) else vr(c, 4))
    return f"v_mfma_f32_16x16x32_bf16 {vr(d,4)}, {vr(a,4)}, {vr(b,4)}, {cs}"

def weave(mf, fill, first=0):
    n = len(mf) - first
    out = []
    k = 0
    for i, m in enumerate(mf):
        out.append(m)
        if i >= first:
            tgt = (len(fill) * (i - first + 1) + n - 1) // n
            while k < tgt:
                out.append(fill[k]); k += 1
    return out

def srd(a, R, lo, nbytes):
    a.e([f"s_mov_b32 s{R}, s{lo}", f"s_and_b32 s{R+1}, s{lo+1}, 0xffff", f"s_mov_b32 s{R+2}, {nbytes}", f"s_mov_b32 s{R+3}, 0x00020000"])

def kernel_head(a, name):
    a.raw(f".globl {name}\n.p2align 8\n.type {name},@function")
    a.lab(name)

def kernel_desc(name, nv, ns=102):
    return f""".amdhsa_kernel {name}
  .amdhsa_next_free_vgpr {nv}
  .amdhsa_next_free_sgpr {ns}
  .amdhsa_accum_offset {nv}
  .amdhsa_group_segment_fixed_size 0
  .amdhsa_kernarg_size 80
  .amdhsa_user_sgpr_count 2
  .amdhsa_user_sgpr_kernarg_segment_ptr 1
  .amdhsa_system_sgpr_workgroup_id_x 1
.end_amdhsa_kernel
"""


import os
PROF = os.environ.get('PROF', '')
REPACK = os.environ.get('REPACK', '0') == '1'
def ts(a, i):
    if PROF: a.e([f"s_memtime s[{70+4*i}:{71+4*i}]", f"s_memrealtime s[{72+4*i}:{73+4*i}]"])
def ts_dump(a, n, sWS, sWave, kidx, sT):
    if not PROF: return
    a.e(["s_waitcnt lgkmcnt(0)", f"s_lshl_b32 s{sT}, s2, 3", f"s_add_u32 s{sT}, s{sT}, s{sWave}", f"s_lshl_b32 s{sT}, s{sT}, 6",
         f"s_add_u32 s{sT}, s{sT}, {(128 << 20) + kidx * (1 << 20)}", "v_mov_b32 v0, 0"])
    for i in range(n):
        a.e([f"v_mov_b32 v2, s{70+4*i}", f"v_mov_b32 v3, s{72+4*i}", f"buffer_store_dwordx2 v[2:3], v0, s[{sWS}:{sWS+3}], s{sT} offen offset:{8*i}", "s_nop 1"])
```

```python
from common import *

AT_LDS = 65536 + 64

def gen_at(a):
    name = "at_kernel"
    sWS = 16
    sWave, sHead, sTB, sT0, sT1, sK, sV, sDst, sCnt, sMode, sStage, sKs, sVs, sK0 = range(20, 34)
    QF = 8
    KF = lambda p: 16 + 8 * p
    VF = lambda p: 32 + 8 * p
    PB = 48
    SS = lambda p: 56 + 16 * p
    OO = 88; NM = 104; LL = 120; SEL = 124
    VK = 2; VV = 3; VL = 1
    kernel_head(a, name)
    a.e(["s_cmp_ge_u32 s2, 256", "s_cbranch_scc1 at_exit",
         "s_load_dwordx2 s[12:13], s[0:1], 72",
         "v_lshrrev_b32 v1, 6, v0", "v_and_b32 v0, 63, v0",
         f"v_readfirstlane_b32 s{sWave}, v1",
         f"s_and_b32 s{sT0}, s2, 7", f"s_lshr_b32 s{sT1}, s2, 3",
         f"s_lshl_b32 s{sHead}, s{sT0}, 2", f"s_and_b32 s{sT0}, s{sT1}, 3", f"s_add_u32 s{sHead}, s{sHead}, s{sT0}",
         f"s_lshr_b32 s{sTB}, s{sT1}, 2", f"s_lshl_b32 s{sTB}, s{sTB}, 3", f"s_add_u32 s{sTB}, s{sTB}, s{sWave}",
         f"v_lshlrev_b32 v{VL}, 4, v0",
         f"s_lshl_b32 s{sK0}, s{sHead}, 17",
         f"s_lshl_b32 s{sDst}, s{sWave}, 10",
         f"s_mov_b32 s{sMode}, 0",
         "s_waitcnt lgkmcnt(0)"])
    ts(a, 0)
    srd(a, sWS, 12, WS_BYTES)
    a.e([f"s_lshl_b32 s{sT0}, s{sTB}, 11", f"s_add_u32 s{sT0}, s{sT0}, s{sK0}",
         f"buffer_load_dwordx4 {vr(QF,4)}, v{VL}, {sr(sWS,4)}, s{sT0} offen",
         f"buffer_load_dwordx4 {vr(QF+4,4)}, v{VL}, {sr(sWS,4)}, s{sT0} offen offset:1024",
         f"s_add_u32 s{sK0}, s{sK0}, {WS_K}"])
    a.e(["v_bfe_u32 v4, v0, 4, 1", f"v_mul_u32_u24 v4, {ACT_TB}, v4", "v_lshrrev_b32 v5, 5, v0", "v_lshl_add_u32 v4, v5, 8, v4",
         "v_and_b32 v5, 15, v0", f"v_lshl_add_u32 v{VV}, v5, 4, v4",
         "v_lshrrev_b32 v4, 2, v0", "v_xor_b32 v4, v4, v0", "v_bfe_u32 v4, v4, 2, 1", "v_add_u32 v4, -1, v4",
         f"v_and_b32 v{SEL}, 0x3f803f80, v4", f"v_mov_b32 v{SEL+1}, v{SEL}", f"v_mov_b32 v{SEL+2}, v{SEL}", f"v_mov_b32 v{SEL+3}, v{SEL}"])
    def dma(slot):
        return [[f"s_add_u32 m0, s{sDst}, {slot*16384}", "s_nop 0", f"buffer_load_dwordx4 v{VL}, {sr(sWS,4)}, s{sKs} offen lds"],
                [f"s_add_u32 m0, s{sDst}, {slot*16384+8192}", "s_nop 0", f"buffer_load_dwordx4 v{VL}, {sr(sWS,4)}, s{sVs} offen lds"]]
    adv = [f"s_cmp_lt_u32 s{sStage}, 16", f"s_cselect_b32 s{sKs}, s{sK}, 0x7f000000", f"s_add_u32 s{sVs}, s{sKs}, {WS_V-WS_K}",
           f"s_add_u32 s{sK}, s{sK}, 8192", f"s_add_u32 s{sStage}, s{sStage}, 1"]
    def kread(p, T):
        o = (T >> 2) * 16384 + (T & 3) * 2048
        return [f"ds_read_b128 {vr(KF(p)+4*s,4)}, v{VL} offset:{o+1024*s}" for s in range(2)]
    def vread(p, T):
        o = (T >> 2) * 16384 + 8192 + (T & 3) * 2048
        return [f"ds_read_b128 {vr(VF(p)+4*s,4)}, v{VL} offset:{o+1024*s}" for s in range(2)]
    a.lab("at_start")
    a.e([f"s_add_u32 s{sK}, s{sK0}, s{sDst}", f"s_mov_b32 s{sStage}, 0"])
    for st in range(3):
        a.e(adv); a.e(dma(st))
    for r in range(16): a.e(f"v_mov_b32 v{OO+r}, 0")
    for r in range(4): a.e([f"v_mov_b32 v{LL+r}, 0", f"v_mov_b32 v{PB+4+r}, 0", f"v_mov_b32 v{VF(1)+4+r}, 0"])
    a.e(["s_waitcnt vmcnt(4)", "s_barrier"])
    a.e(kread(0, 0) + kread(1, 1) + vread(0, 0))
    a.e([f"s_cmp_lg_u32 s{sMode}, 0", "s_cbranch_scc1 at_havemax", "s_waitcnt lgkmcnt(4)",
         mfma32(SS(0), KF(0), QF, "0"), mfma32(SS(0), KF(0) + 4, QF + 4), "s_nop 7", "s_nop 3"])
    S = SS(0)
    a.e([f"v_max3_f32 v4, v{S}, v{S+1}, v{S+2}"] + [f"v_max3_f32 v4, v4, v{S+3+2*i}, v{S+4+2*i}" for i in range(6)] + [f"v_max_f32 v4, v4, v{S+15}",
         "v_mov_b32 v5, v4", "s_nop 1", "v_permlane32_swap_b32 v4, v5", "v_max_f32 v4, v4, v5"])
    for r in range(16): a.e(f"v_sub_f32 v{NM+r}, 0, v4")
    a.lab("at_havemax")
    a.e(["s_waitcnt lgkmcnt(4)", "s_nop 1", mfma32(SS(0), KF(0), QF, NM), mfma32(SS(0), KF(0) + 4, QF + 4), "s_nop 7", "s_nop 3",
         f"s_mov_b32 s{sCnt}, 4"])
    ts(a, 1)
    a.raw(".p2align 6")
    a.lab("at_loop")
    for t in range(16):
        p = t & 1; q = 1 - p
        S = SS(p)
        ex = [f"v_exp_f32 v{S+i}, v{S+i}" for i in range(16)]
        cv = [f"v_cvt_pk_bf16_f32 v{PB+i}, v{S+2*i}, v{S+2*i+1}" for i in range(8)]
        M5 = mfma32(OO, VF(q) + 4, PB + 4); M6 = mfma16(LL, SEL, PB + 4)
        M1 = mfma32(SS(q), KF(q), QF, NM); M2 = mfma32(SS(q), KF(q) + 4, QF + 4)
        M3 = mfma32(OO, VF(p), PB); M4 = mfma16(LL, SEL, PB)
        rd = kread(p, (t + 2) & 15) + vread(q, (t + 1) & 15)
        sync = []; dm = [[], []]
        if t & 3 == 2:
            sync = ["s_waitcnt vmcnt(2)", "s_barrier"] + adv
            dm = dma(((t >> 2) + 3) & 3)
        a.e([M5, "s_waitcnt lgkmcnt(0)"] + sync + ex[0:2] + rd[0:2] + ex[2:4] + [M1] + rd[2:4] + ex[4:8] + [M6] + cv[0:4] + dm[0] + ex[8:9] + [M2]
            + ex[9:13] + [M3] + dm[1] + ex[13:16] + [M4] + cv[4:8] + ["s_nop 0"])
        if t == 15:
            a.e([f"s_sub_u32 s{sCnt}, s{sCnt}, 1", f"s_cmp_lg_u32 s{sCnt}, 0", "s_cbranch_scc1 at_loop"])
        else: a.e("s_nop 0")
    a.e([mfma32(OO, VF(1) + 4, PB + 4), mfma16(LL, SEL, PB + 4), "s_waitcnt vmcnt(0) lgkmcnt(0)", "s_nop 7", "s_nop 3"])
    ts(a, 2)
    a.e([f"v_max3_f32 v4, |v{OO}|, |v{OO+1}|, |v{OO+2}|"] + [f"v_max3_f32 v4, v4, |v{OO+3+2*i}|, |v{OO+4+2*i}|" for i in range(6)] + [f"v_max_f32 v4, v4, |v{OO+15}|",
         f"v_cmp_nlt_f32 vcc, v{LL}, {hex(f2u(2.0**24))}" if False else f"v_mov_b32 v5, {hex(f2u(2.0**24))}",
         f"v_cmp_nlt_f32 vcc, v{LL}, v5", f"v_mov_b32 v5, {hex(f2u(2.0**126))}", "v_cmp_nlt_f32 s[34:35], v4, v5",
         "s_nop 1", "s_or_b64 vcc, vcc, s[34:35]", "s_cmp_lg_u64 vcc, 0", f"s_cselect_b32 s{sT0}, 1, 0",
         f"v_mov_b32 v5, s{sT0}", f"s_lshl_b32 s{sT1}, s{sWave}, 2", f"s_add_u32 s{sT1}, s{sT1}, 65536", f"v_mov_b32 v6, s{sT1}",
         "ds_write_b32 v6, v5", "s_waitcnt lgkmcnt(0)", "s_barrier",
         "v_mov_b32 v6, 65536", f"ds_read_b128 {vr(KF(0),4)}, v6", f"ds_read_b128 {vr(KF(0)+4,4)}, v6 offset:16", "s_waitcnt lgkmcnt(0)",
         f"v_or3_b32 v5, v{KF(0)}, v{KF(0)+1}, v{KF(0)+2}", f"v_or3_b32 v5, v5, v{KF(0)+3}, v{KF(0)+4}", f"v_or3_b32 v5, v5, v{KF(0)+5}, v{KF(0)+6}",
         f"v_or_b32 v5, v5, v{KF(0)+7}", "s_nop 0", f"v_readfirstlane_b32 s{sT0}, v5", "s_nop 1",
         f"s_andn2_b32 s{sT0}, s{sT0}, s{sMode}", f"s_cmp_lg_u32 s{sT0}, 0", "s_cbranch_scc1 at_fallback"])
    a.e([f"v_rcp_f32 v4, v{LL}", "s_nop 0"])
    for r in range(16): a.e(f"v_mul_f32 v{OO+r}, v4, v{OO+r}")
    for r in range(8): a.e(f"v_cvt_pk_bf16_f32 v{PB+r}, v{OO+2*r}, v{OO+2*r+1}")
    a.e([f"s_mul_i32 s{sT0}, s{sTB}, {2*ACT_TB}", f"s_lshl_b32 s{sT1}, s{sHead}, 10", f"s_add_u32 s{sT0}, s{sT0}, s{sT1}",
         f"s_add_u32 s{sT0}, s{sT0}, {WS_ACT + 112*1024}",
         f"buffer_store_dwordx4 {vr(PB,4)}, v{VV}, {sr(sWS,4)}, s{sT0} offen",
         f"buffer_store_dwordx4 {vr(PB+4,4)}, v{VV}, {sr(sWS,4)}, s{sT0} offen offset:512"])
    ts(a, 3)
    if PROF: a.e("s_waitcnt vmcnt(0)")
    ts(a, 4)
    ts_dump(a, 5, sWS, sWave, 1, sT0)
    a.e("s_endpgm")
    a.lab("at_fallback")
    S = SS(0)
    a.e([f"s_mov_b32 s{sMode}, 1", f"s_mov_b32 s{sCnt}, 64", f"s_mov_b32 s{sT0}, s{sK0}", "v_mov_b32 v4, 0xff800000"])
    a.lab("at_fb_loop")
    a.e([f"buffer_load_dwordx4 {vr(KF(0),4)}, v{VL}, {sr(sWS,4)}, s{sT0} offen",
         f"buffer_load_dwordx4 {vr(KF(0)+4,4)}, v{VL}, {sr(sWS,4)}, s{sT0} offen offset:1024",
         "s_waitcnt vmcnt(0)",
         mfma32(S, KF(0), QF, "0"), mfma32(S, KF(0) + 4, QF + 4), "s_nop 7", "s_nop 3"])
    a.e([f"v_max3_f32 v4, v4, v{S+2*i}, v{S+1+2*i}" for i in range(8)])
    a.e([f"s_add_u32 s{sT0}, s{sT0}, 2048", f"s_sub_u32 s{sCnt}, s{sCnt}, 1", f"s_cmp_lg_u32 s{sCnt}, 0", "s_cbranch_scc1 at_fb_loop",
         "v_mov_b32 v5, v4", "s_nop 1", "v_permlane32_swap_b32 v4, v5", "v_max_f32 v4, v4, v5"])
    for r in range(16): a.e(f"v_sub_f32 v{NM+r}, 0, v4")
    a.e(["s_barrier", "s_branch at_start"])
    a.lab("at_exit")
    a.e("s_endpgm")
    return kernel_desc(name, 128), f"; @launch kernel={name} grid=(256,1,1) block=(512,1,1) lds={AT_LDS}"
```

```python
from common import *

FIN_ST = 49152
FIN_LDS = 3 * FIN_ST

def gen_fin(a):
    name = "fin_kernel"
    sX, sWD, sWO, sOUT, sWS, sW = 16, 20, 24, 28, 32, 36
    sWave, sTh, sKq, sMt, sNt, sT0, sT1, sA, sWo, sSt, sCnt, sDa, sDw, sAs, sWs, sOut = range(40, 56)
    ACC = lambda cb, ti: 64 + 16 * ti + 4 * cb
    AF = lambda cb: 16 + 4 * cb
    BF = lambda p, ti: 32 + 16 * p + 4 * ti
    VL = 1; VW0 = 2; VW1 = 3
    VA = lambda hi, cb: 128 + 4 * hi + cb
    VB = lambda hi, ti: 136 + 4 * hi + ti
    VO = 144
    kernel_head(a, name)
    a.e(["s_cmp_ge_u32 s2, 256", "s_cbranch_scc1 fin_exit",
         "s_load_dwordx2 s[4:5], s[0:1], 0", "s_load_dwordx2 s[6:7], s[0:1], 16", "s_load_dwordx4 s[8:11], s[0:1], 48", "s_load_dwordx2 s[12:13], s[0:1], 72",
         "v_lshrrev_b32 v1, 6, v0", "v_and_b32 v0, 63, v0",
         f"v_readfirstlane_b32 s{sWave}, v1",
         f"s_lshr_b32 s{sT1}, s2, 3",
         f"s_bfe_u32 s{sMt}, s2, 0x20001", f"s_lshl_b32 s{sMt}, s{sMt}, 2", f"s_and_b32 s{sT0}, s{sT1}, 3", f"s_add_u32 s{sMt}, s{sMt}, s{sT0}",
         f"s_and_b32 s{sNt}, s2, 1", f"s_lshl_b32 s{sNt}, s{sNt}, 3", f"s_lshr_b32 s{sT0}, s{sT1}, 2", f"s_add_u32 s{sNt}, s{sNt}, s{sT0}",
         f"s_lshr_b32 s{sTh}, s{sWave}, 2", f"s_and_b32 s{sKq}, s{sWave}, 3",
         f"v_lshlrev_b32 v{VL}, 4, v0",
         "s_waitcnt lgkmcnt(0)"])
    ts(a, 0)
    srd(a, sX, 4, 2048 * 2048)
    srd(a, sWO, 6, 1024 * 2048)
    srd(a, sWD, 8, 3584 * 2048)
    srd(a, sOUT, 10, 2048 * 2048)
    srd(a, sWS, 12, WS_BYTES)
    a.e([f"s_mov_b32 s{sW+3}, 0x00020000"])
    a.e([f"s_lshl_b32 s{sT0}, s{sMt}, 3", f"s_add_u32 s{sT0}, s{sT0}, s{sWave}",
         f"s_mul_i32 s{sA}, s{sT0}, {ACT_TB}", f"s_add_u32 s{sA}, s{sA}, {WS_ACT}",
         f"s_lshl_b32 s{sWo}, s{sNt}, 7", f"s_lshl_b32 s{sT1}, s{sWave}, 15", f"s_add_u32 s{sWo}, s{sWo}, s{sT1}",
         f"s_lshl_b32 s{sDa}, s{sWave}, 12", f"s_lshl_b32 s{sDw}, s{sWave}, 11", f"s_add_u32 s{sDw}, s{sDw}, 32768",
         "v_lshrrev_b32 v4, 3, v0", "v_and_b32 v5, 7, v0", "v_and_b32 v6, 6, v4", "v_xor_b32 v5, v5, v6",
         "v_lshlrev_b32 v4, 11, v4", f"v_lshl_add_u32 v{VW0}, v5, 4, v4", f"v_add_u32 v{VW1}, {16384-1024}, v{VW0}",
         f"s_mov_b32 s{sSt}, 0"])
    adv = [f"s_cmp_lt_u32 s{sSt}, 28",
           f"s_cselect_b32 s{sW}, s{sWD}, s{sWO}", f"s_cselect_b32 s{sW+1}, s{sWD+1}, s{sWO+1}", f"s_cselect_b32 s{sW+2}, s{sWD+2}, s{sWO+2}",
           f"s_cselect_b32 s{sT0}, 0, {28*262144}", f"s_sub_u32 s{sWs}, s{sWo}, s{sT0}",
           f"s_cmp_lt_u32 s{sSt}, 36", f"s_cselect_b32 s{sAs}, s{sA}, 0x7f000000",
           f"s_add_u32 s{sA}, s{sA}, 4096", f"s_add_u32 s{sWo}, s{sWo}, 262144", f"s_add_u32 s{sSt}, s{sSt}, 1"]
    def dma(sl):
        o = [[f"s_add_u32 m0, s{sDa}, {sl*FIN_ST}", "s_nop 0", f"buffer_load_dwordx4 v{VL}, {sr(sWS,4)}, s{sAs} offen lds"]]
        o += [[f"buffer_load_dwordx4 v{VL}, {sr(sWS,4)}, s{sAs} offen offset:{1024*i} lds"] for i in range(1, 4)]
        o += [[f"s_add_u32 m0, s{sDw}, {sl*FIN_ST}", "s_nop 0", f"buffer_load_dwordx4 v{VW0}, {sr(sW,4)}, s{sWs} offen lds"]]
        o += [[f"buffer_load_dwordx4 v{VW1}, {sr(sW,4)}, s{sWs} offen offset:1024 lds"]]
        return o
    a.e([f"s_lshl_b32 s{sOut}, s{sMt}, 18", f"s_lshl_b32 s{sT0}, s{sWave}, 15", f"s_add_u32 s{sOut}, s{sOut}, s{sT0}",
         f"s_lshl_b32 s{sT0}, s{sNt}, 7", f"s_add_u32 s{sOut}, s{sOut}, s{sT0}",
         "v_and_b32 v4, 15, v0", "v_lshlrev_b32 v4, 11, v4", "v_lshrrev_b32 v5, 4, v0",
         "v_lshl_add_u32 v6, v5, 3, v4",
         "v_and_b32 v7, 1, v5", f"v_lshl_add_u32 v{VO}, v7, 5, v4", "v_lshrrev_b32 v7, 1, v5", f"v_lshl_add_u32 v{VO}, v7, 4, v{VO}"])
    for i in range(4): a.e(f"buffer_load_dwordx2 {vr(8+2*i,2)}, v6, {sr(sX,4)}, s{sOut} offen offset:{32*i}")
    for st in range(3):
        a.e(adv); a.e(dma(st))
    a.e(["v_lshrrev_b32 v4, 2, v0",
         "v_bfe_u32 v6, v4, 1, 2", "v_lshlrev_b32 v6, 5, v6",
         "v_lshlrev_b32 v4, 7, v4", "v_and_b32 v7, 3, v0", "v_lshl_add_u32 v4, v7, 3, v4",
         f"s_lshl_b32 s{sT0}, s{sKq}, 12", f"s_add_u32 s{sT0}, s{sT0}, 32768", f"v_add_u32 v4, s{sT0}, v4"])
    for cb in range(4):
        a.e([f"v_xor_b32 v7, {32*cb}, v6", f"v_add_u32 v{VA(0,cb)}, v4, v7", f"v_add_u32 v{VA(1,cb)}, {FIN_ST}, v{VA(0,cb)}"])
    for ti in range(4):
        a.e([f"s_xor_b32 s{sT0}, s{sWave}, {ti}", f"s_lshl_b32 s{sT0}, s{sT0}, 12", f"s_lshl_b32 s{sT1}, s{sKq}, 10", f"s_add_u32 s{sT0}, s{sT0}, s{sT1}",
             f"v_add_u32 v{VB(0,ti)}, s{sT0}, v{VL}", f"v_add_u32 v{VB(1,ti)}, {FIN_ST}, v{VB(0,ti)}"])
    for r in range(ACC(0, 1), ACC(0, 4)): a.e(f"v_mov_b32 v{r}, 0")
    a.e("s_waitcnt vmcnt(18)")
    for i in range(8):
        a.e([f"v_lshlrev_b32 v{ACC(0,0)+2*i}, 16, v{8+i}", f"v_and_b32 v{ACC(0,0)+2*i+1}, 0xffff0000, v{8+i}"])
    def aread(cb, sl):
        return [f"ds_read_b64_tr_b16 {vr(AF(cb)+2*hf,2)}, v{VA(min(sl,1),cb)} offset:{(sl>>1)*FIN_ST + 2048*hf}" for hf in range(2)]
    def bread(p, sl):
        return [f"ds_read_b128 {vr(BF(p,ti),4)}, v{VB(min(sl,1),ti)} offset:{(sl>>1)*FIN_ST}" for ti in range(4)]
    a.e(["s_waitcnt vmcnt(12)", "s_barrier"])
    ts(a, 1)
    a.e(bread(0, 0))
    for cb in range(4): a.e(aread(cb, 0))
    a.e(f"s_mov_b32 s{sCnt}, 6")
    a.raw(".p2align 6")
    a.lab("fin_loop")
    for st in range(6):
        sl = st % 3; nx = (st + 1) % 3; p = st & 1
        mm = lambda cb: [mfma16(ACC(cb, ti), AF(cb), BF(p, ti)) for ti in range(4)]
        d = dma(sl); br = bread(1 - p, nx)
        a.e(["s_waitcnt lgkmcnt(6)"] + mm(0) + adv + ["s_waitcnt vmcnt(6) lgkmcnt(0)", "s_barrier"])
        for cb in range(1, 4):
            ar = aread(cb - 1, nx)
            m = mm(cb)
            if cb == 1: f = [br[0:2], br[2:4], ar[0:1], ar[1:2] + d[0]]
            elif cb == 2: f = [ar[0:1], ar[1:2], d[1], d[2]]
            else: f = [ar[0:1], ar[1:2] + d[3], d[4], d[5]]
            for ti in range(4): a.e(f[ti]); a.e(m[ti])
        a.e(aread(3, nx))
    a.e([f"s_sub_u32 s{sCnt}, s{sCnt}, 1", f"s_cmp_lg_u32 s{sCnt}, 0", "s_cbranch_scc1 fin_loop"])
    ts(a, 2)
    a.e(["s_waitcnt vmcnt(0) lgkmcnt(0)", "s_barrier"])
    for i in range(1, 4):
        a.e([f"s_xor_b32 s{sT0}, s{sWave}, {i}", f"s_mul_i32 s{sT0}, s{sT0}, 12288", f"s_add_u32 s{sT0}, s{sT0}, {(i-1)*4096}", f"v_add_u32 v{4+i}, s{sT0}, v{VL}"])
    a.e([f"s_mul_i32 s{sT0}, s{sWave}, 12288", f"v_add_u32 v4, s{sT0}, v{VL}"])
    for i in range(1, 4):
        for q in range(4): a.e(f"ds_write_b128 v{4+i}, {vr(ACC(q,i),4)} offset:{1024*q}")
    a.e(["s_waitcnt lgkmcnt(0)", "s_barrier"])
    for i in range(1, 4):
        for q in range(4): a.e(f"ds_read_b128 {vr(ACC(q,i),4)}, v4 offset:{(i-1)*4096+1024*q}")
    for i in range(1, 4):
        a.e(f"s_waitcnt lgkmcnt({4*(3-i)})")
        for r in range(16): a.e(f"v_add_f32 v{ACC(0,0)+r}, v{ACC(0,0)+r}, v{ACC(0,i)+r}")
    for r in range(8): a.e(f"v_cvt_pk_bf16_f32 v{16+r}, v{ACC(0,0)+2*r}, v{ACC(0,0)+2*r+1}")
    a.e("s_nop 1")
    for pr in range(2):
        a.e([f"v_permlane16_swap_b32 v{16+4*pr}, v{18+4*pr}", f"v_permlane16_swap_b32 v{17+4*pr}, v{19+4*pr}"])
    for pr in range(2):
        a.e(f"buffer_store_dwordx4 {vr(16+4*pr,4)}, v{VO}, {sr(sOUT,4)}, s{sOut} offen offset:{64*pr}")
    ts(a, 3)
    if PROF: a.e("s_waitcnt vmcnt(0)")
    ts(a, 4)
    ts_dump(a, 5, sWS, sWave, 2, sT0)
    a.e("s_endpgm")
    a.lab("fin_exit")
    a.e("s_endpgm")
    return kernel_desc(name, 152), f"; @launch kernel={name} grid=(256,1,1) block=(512,1,1) lds={FIN_LDS}"
```

```python
from common import *
import os
G1X = os.environ.get('G1X', '')
ST = os.environ.get('ST', '')

G1_WST = 20480
G1_XR = 4 * G1_WST
G1_XST = 16384
G1_LDS = G1_XR + 4 * G1_XST

def gen_g1(a):
    name = "g1_kernel"
    ACC = lambda b, tb: 96 + (b * 4 + tb) * 4
    AF = lambda b: 16 + 4 * b
    BF = lambda p, tb: 56 + 16 * p + 4 * tb
    VA = 1; VB = 11; VD = 88
    sWQ, sWG, sWU, sGU, sWS = 20, 24, 28, 32, 36
    sWave, sMw, sNw, sMt, sNt, sP, sIsA, sF0 = 40, 41, 42, 43, 44, 45, 46, 47
    sQ, sG, sT0, sT1, sT2, sCnt, sDst, sXs = 48, 49, 50, 51, 52, 53, 54, 55
    kernel_head(a, name)
    a.e(["s_cmp_ge_u32 s2, 256", "s_cbranch_scc1 g1_exit",
         "s_load_dwordx2 s[6:7], s[0:1], 8", "s_load_dwordx4 s[8:11], s[0:1], 32", "s_load_dwordx2 s[12:13], s[0:1], 72",
         "v_lshrrev_b32 v12, 6, v0", "v_and_b32 v0, 63, v0",
         f"v_readfirstlane_b32 s{sWave}, v12",
         f"s_and_b32 s{sT0}, s2, 7", f"s_lshr_b32 s{sT1}, s2, 3",
         f"s_lshl_b32 s{sNt}, s{sT0}, 2", f"s_and_b32 s{sT0}, s{sT1}, 3", f"s_add_u32 s{sNt}, s{sNt}, s{sT0}",
         f"s_lshr_b32 s{sMt}, s{sT1}, 2",
         f"s_lshr_b32 s{sP}, s{sNt}, 1",
         f"s_xor_b32 s{sIsA}, s{sNt}, s{sP}", f"s_and_b32 s{sIsA}, s{sIsA}, 1",
         f"s_mul_i32 s{sF0}, s{sP}, 224",
         f"s_lshl_b32 s{sT0}, s{sIsA}, 5", f"s_add_u32 s{sT0}, s{sT0}, 96",
         f"s_bitcmp1_b32 s{sNt}, 0", f"s_cselect_b32 s{sT0}, s{sT0}, 0", f"s_add_u32 s{sF0}, s{sF0}, s{sT0}",
         f"s_and_b32 s{sMw}, s{sWave}, 3", f"s_lshr_b32 s{sNw}, s{sWave}, 2",
         f"s_lshl_b32 s{sT0}, s{sIsA}, 1", f"s_add_u32 s{sT0}, s{sT0}, s{sNw}"])
    for v in range(1, 4):
        a.e([f"s_cmp_eq_u32 s{sT0}, {v}", f"s_cbranch_scc1 g1_v{v}"])

    def variant(isA, nw):
        V = isA * 2 + nw
        if isA: S0, SG, RO_G, RO_U = 256, 192, 8192, 14336
        else: S0, SG, RO_G, RO_U = 128, 256, 4096, 12288
        if isA: qk = list(range(6)) if nw == 0 else [6, 7]; quads = [0] if nw == 0 else [1, 2]
        else: qk = [2 * nw, 2 * nw + 1]; quads = [2 * nw, 2 * nw + 1]
        blocks = [('q', i) for i in qk]
        for q in quads: blocks += [('g', 2 * q), ('g', 2 * q + 1), ('u', 2 * q), ('u', 2 * q + 1)]
        stride = [S0 if k == 'q' else SG for k, _ in blocks]
        a.lab(f"g1_v{V}")
        def slot_decode(dst, S, base_s, gstride, kind):
            o = [f"v_add_u32 v12, {base_s}, v0"]
            if S == 192:
                o += ["v_mul_u32_u24 v13, 43691, v12", "v_lshrrev_b32 v13, 19, v13", "v_mul_u32_u24 v14, 12, v13", "v_sub_u32 v14, v12, v14",
                      "v_bfe_u32 v15, v13, 3, 1", "v_lshlrev_b32 v15, 1, v15", "v_xor_b32 v14, v14, v15"]
            elif S == 256:
                o += ["v_lshrrev_b32 v13, 4, v12", "v_and_b32 v14, 15, v12", "v_and_b32 v15, 3, v13", "v_lshlrev_b32 v15, 1, v15", "v_xor_b32 v14, v14, v15",
                      "v_and_b32 v15, 8, v13", "v_xor_b32 v14, v14, v15"]
            else:
                o += ["v_lshrrev_b32 v13, 3, v12", "v_and_b32 v14, 7, v12", "v_and_b32 v15, 2, v13", "v_xor_b32 v14, v14, v15",
                      "v_bfe_u32 v15, v13, 3, 1", "v_lshlrev_b32 v15, 2, v15", "v_xor_b32 v14, v14, v15"]
            o += [f"v_mul_u32_u24 v13, {gstride}, v13"]
            if kind == 'qk':
                o += ["v_lshrrev_b32 v15, 3, v14", "v_lshl_add_u32 v13, v15, 11, v13", "v_and_b32 v14, 7, v14"]
            o += [f"v_lshl_add_u32 v{dst}, v14, 4, v13"]
            return o
        if nw == 0:
            a.e([f"s_lshl_b32 s{sT0}, s{sMw}, 6", f"s_lshl_b32 s{sDst}, s{sMw}, 10"])
            if isA: plan = [('q', 0), ('q', 256), ('g', 0), ('gu', None), ('u', 128)]
            else: plan = [('q', 0), ('g', 0), ('g', 256), ('u', 0), ('u', 256)]
            for i, (k, sb) in enumerate(plan):
                if k == 'gu':
                    a.e([f"s_cmp_lt_u32 s{sMw}, 2", f"s_cselect_b32 s{sT1}, 384, 0", f"s_add_u32 s{sT1}, s{sT1}, s{sT0}", f"s_sub_u32 s{sT1}, s{sT1}, 128"])
                    a.e(slot_decode(VD + i, SG, f"s{sT1}", 7168, 'g'))
                else:
                    a.e([f"s_add_u32 s{sT1}, s{sT0}, {sb}"])
                    if k == 'q': a.e(slot_decode(VD + i, S0, f"s{sT1}", 6144, 'qk' if isA else 'v'))
                    else: a.e(slot_decode(VD + i, SG, f"s{sT1}", 7168, 'g'))
            srds = [{'q': sWQ, 'g': sWG, 'u': sWU, 'gu': sGU}[k] for k, _ in plan]
            soffs = [sQ if k == 'q' else sG for k, _ in plan]
            a.e([f"s_lshl_b32 s{sQ}, s{sP}, 7"] + ([] if isA else [f"s_add_u32 s{sQ}, s{sQ}, 4096"]) + [f"s_lshl_b32 s{sG}, s{sF0}, 1"])
            a.e("s_waitcnt lgkmcnt(0)")
            ts(a, 0)
            srd(a, sWQ, 6, 1024 * 6144)
            srd(a, sWG, 8, 1024 * 7168)
            srd(a, sWU, 10, 1024 * 7168)
            if isA:
                a.e([f"s_cmp_lt_u32 s{sMw}, 2", f"s_cselect_b32 s{sGU}, s{sWG}, s{sWU}", f"s_cselect_b32 s{sGU+1}, s{sWG+1}, s{sWU+1}",
                     f"s_mov_b32 s{sGU+2}, {1024*7168}", f"s_mov_b32 s{sGU+3}, 0x00020000"])
            def dma(sl):
                o = [[f"s_add_u32 m0, s{sDst}, {sl*G1_WST + 4096*i}", "s_nop 0", f"buffer_load_dwordx4 v{VD+i}, {sr(srds[i],4)}, s{soffs[i]} offen lds"] for i in range(5)]
                o[-1] = o[-1] + [f"s_add_u32 s{sQ}, s{sQ}, {32*6144}", f"s_add_u32 s{sG}, s{sG}, {32*7168}"]
                return o
            ND = 5
            for st in range(4): a.e(dma(st))
            srd(a, sWS, 12, WS_BYTES)
        else:
            a.e([f"v_lshlrev_b32 v{VD}, 4, v0"] + [f"v_add_u32 v{VD+i}, {i*(32768-1024)}, v{VD}" for i in range(1, 4)])
            a.e([f"s_lshl_b32 s{sXs}, s{sMt}, 19", f"s_lshl_b32 s{sT0}, s{sMw}, 17", f"s_add_u32 s{sXs}, s{sXs}, s{sT0}", f"s_add_u32 s{sXs}, s{sXs}, {WS_XN}",
                 f"s_lshl_b32 s{sDst}, s{sMw}, 12", f"s_add_u32 s{sDst}, s{sDst}, {G1_XR}", "s_waitcnt lgkmcnt(0)"])
            ts(a, 0)
            srd(a, sWS, 12, WS_BYTES)
            def dma(sl):
                o = [[f"buffer_load_dwordx4 v{VD+i}, {sr(sWS,4)}, s{sXs} offen offset:{1024*i} lds"] for i in range(4)]
                o[0] = [f"s_add_u32 m0, s{sDst}, {sl*G1_XST}", "s_nop 0"] + o[0]
                o[-1] = o[-1] + [f"s_add_u32 s{sXs}, s{sXs}, 1024"]
                return o
            ND = 4
            for st in range(4): a.e(dma(st))
        a.e(["v_bfe_u32 v12, v0, 2, 2", "v_lshrrev_b32 v13, 4, v0", "v_lshl_add_u32 v14, v13, 3, v12", "v_and_b32 v15, 3, v0", "v_lshlrev_b32 v15, 3, v15",
             "v_and_b32 v13, 1, v13"])
        for S in sorted(set(stride)):
            if S == 256: a.e(["v_lshl_add_u32 v93, v13, 2, v12"])
            elif S == 192: a.e(["v_mov_b32 v93, v13"])
            else: a.e(["v_lshrrev_b32 v93, 1, v12", "v_lshl_add_u32 v93, v13, 1, v93"])
            a.e(["v_lshlrev_b32 v93, 5, v93", f"v_mul_u32_u24 v94, {S}, v14", "v_add_u32 v94, v94, v15"])
            for b, (k, idx) in enumerate(blocks):
                if stride[b] != S: continue
                ro = {'q': 0, 'g': RO_G, 'u': RO_U}[k]
                a.e([f"v_xor_b32 v95, {32*idx}, v93", f"v_add_u32 v95, {ro}, v95", f"v_add_u32 v{VA+b}, v94, v95"])
        a.e([f"s_lshl_b32 s{sT0}, s{sMw}, 12", f"s_add_u32 s{sT0}, s{sT0}, {G1_XR}", f"v_lshlrev_b32 v{VB}, 4, v0", f"v_add_u32 v{VB}, s{sT0}, v{VB}"])
        def aread(b, sl):
            return [f"ds_read_b64_tr_b16 {vr(AF(b)+2*h,2)}, v{VA+b} offset:{sl*G1_WST + 4*h*stride[b]}" for h in range(2)]
        def bread(p, sl):
            return [f"ds_read_b128 {vr(BF(p,tb),4)}, v{VB} offset:{sl*G1_XST + 1024*tb}" for tb in range(4)]
        def mm(b, tb, p, c=None):
            if blocks[b][0] == 'q' and not isA: return mfma16(ACC(b, tb), BF(p, tb), AF(b), c)
            return mfma16(ACC(b, tb), AF(b), BF(p, tb), c)
        a.e([f"s_waitcnt vmcnt({3*ND})", "s_barrier"])
        ts(a, 1)
        a.e(bread(0, 0))
        for b in range(10): a.e(aread(b, 0))
        def stage(sl, first=False, dmas=True, reads=True, vm=2):
            p = sl & 1; nx = (sl + 1) & 3
            c = "0" if first else None
            a.e("s_waitcnt lgkmcnt(15)")
            a.e([mm(0, tb, p, c) for tb in range(4)])
            if reads:
                a.e(["s_waitcnt lgkmcnt(0)" if vm is None else f"s_waitcnt vmcnt({vm*ND}) lgkmcnt(0)"] + ([] if 'b' in G1X else ["s_barrier"]))
            else: a.e("s_waitcnt lgkmcnt(0)")
            dm = dma(sl) if dmas and 'm' not in G1X else []
            br = bread(1 - p, nx) if reads and 'r' not in G1X else []
            for b in range(1, 10):
                ar = aread(b - 1, nx) if reads and 'r' not in G1X else [[], []]
                f = [[ar[0]], [ar[1]], [], []]
                if b <= 2 and br: f[2] = [br[2*(b-1)]]; f[3] = [br[2*(b-1)+1]]
                if 3 <= b < 3 + len(dm): f[2] = dm[b - 3]
                for tb in range(4):
                    a.e(f[tb]); a.e(mm(b, tb, p, c))
            if reads and 'r' not in G1X: a.e(aread(9, nx))
        for sl in range(4): stage(sl, first=(sl == 0))
        a.e(f"s_mov_b32 s{sCnt}, 6")
        a.raw(".p2align 6")
        a.lab(f"g1_loop{V}")
        for sl in range(4): stage(sl)
        a.e([f"s_sub_u32 s{sCnt}, s{sCnt}, 1", f"s_cmp_lg_u32 s{sCnt}, 0", f"s_cbranch_scc1 g1_loop{V}"])
        stage(0, dmas=False, vm=2); stage(1, dmas=False, vm=1); stage(2, dmas=False, vm=0); stage(3, dmas=False, reads=False)
        ts(a, 2)
        a.e(["v_lshlrev_b32 v1, 4, v0",
             "v_lshrrev_b32 v12, 4, v0", "v_lshlrev_b32 v12, 9, v12", "v_and_b32 v13, 15, v0", "v_lshl_add_u32 v2, v13, 4, v12",
             "v_bfe_u32 v13, v0, 3, 1", "v_lshl_add_u32 v12, v13, 8, v12", "v_and_b32 v13, 7, v0", "v_lshl_add_u32 v3, v13, 4, v12",
             f"s_mov_b32 s{sT2}, {hex(f2u(-LOG2E))}", f"s_mov_b32 s{sCnt}, {hex(f2u(LOG2E * 32 ** -0.5))}",
             f"s_lshl_b32 s{sT0}, s{sMt}, 3", f"s_lshl_b32 s{sT1}, s{sMw}, 1", f"s_add_u32 s{sT0}, s{sT0}, s{sT1}",
             f"s_lshl_b32 s{sQ}, s{sT0}, 11", f"s_lshl_b32 s{sT1}, s{sP}, 18", f"s_add_u32 s{sQ}, s{sQ}, s{sT1}",
             f"s_mul_i32 s{sG}, s{sT0}, {2*ACT_TB}", f"s_lshl_b32 s{sT1}, s{sF0}, 5", f"s_add_u32 s{sG}, s{sG}, s{sT1}",
             f"s_add_u32 s{sG}, s{sG}, {WS_ACT}"])
        tmp = [16 + 4 * i for i in range(18)]
        ti = [0]
        def T():
            t = tmp[ti[0] % len(tmp)]; ti[0] += 1; return t
        for hp in range(len(qk) // 2):
            b0 = 2 * hp; idx = qk[b0] >> 1
            if isA:
                isq = idx < 2
                a.e(f"s_add_u32 s{sT0}, s{sQ}, {(WS_Q if isq else WS_K) + (idx & 1) * 131072}")
                for tb in range(4):
                    t = T()
                    for u in range(2):
                        D = ACC(b0 + u, tb)
                        if isq: a.e([f"v_mul_f32 v{D+j}, s{sCnt}, v{D+j}" for j in range(4)])
                        a.e([f"v_cvt_pk_bf16_f32 v{t+2*u+j}, v{D+2*j}, v{D+2*j+1}" for j in range(2)])
                    off = (tb >> 1) * 2048 + (tb & 1) * (256 if isq else 128)
                    a.e(f"buffer_store_dwordx4 {vr(t,4)}, v{2 if isq else 3}, {sr(sWS,4)}, s{sT0} offen offset:{off}{ST}")
            else:
                a.e(f"s_add_u32 s{sT0}, s{sQ}, {WS_V + (idx & 1) * 131072}")
                for db in range(2):
                    for i in range(2):
                        t = T()
                        for u in range(2):
                            D = ACC(b0 + db, 2 * i + u)
                            a.e([f"v_cvt_pk_bf16_f32 v{t+2*u+j}, v{D+2*j}, v{D+2*j+1}" for j in range(2)])
                        a.e(f"buffer_store_dwordx4 {vr(t,4)}, v3, {sr(sWS,4)}, s{sT0} offen offset:{i*2048 + db*128}{ST}")
        for qi, q in enumerate(quads):
            b0 = len(qk) + 4 * qi
            for tb in range(4):
                t = T()
                G = [ACC(b0 + u, tb) + j for u in range(2) for j in range(4)]
                U = [ACC(b0 + 2 + u, tb) + j for u in range(2) for j in range(4)]
                a.e([f"v_mul_f32 v{g}, s{sT2}, v{g}" for g in G])
                a.e([f"v_exp_f32 v{g}, v{g}" for g in G])
                a.e([f"v_add_f32 v{g}, 1.0, v{g}" for g in G])
                a.e([f"v_rcp_f32 v{g}, v{g}" for g in G])
                a.e([f"v_mul_f32 v{g}, v{g}, v{u}" for g, u in zip(G, U)])
                a.e([f"v_cvt_pk_bf16_f32 v{t+j}, v{G[2*j]}, v{G[2*j+1]}" for j in range(4)])
                a.e(f"s_add_u32 s{sT0}, s{sG}, {tb*ACT_TB + q*1024}")
                a.e(f"buffer_store_dwordx4 {vr(t,4)}, v1, {sr(sWS,4)}, s{sT0} offen{ST}")
        ts(a, 3)
        if PROF: a.e("s_waitcnt vmcnt(0)")
        ts(a, 4)
        ts_dump(a, 5, sWS, sWave, 0, sT0)
        a.e("s_endpgm")

    for isA in (0, 1):
        for nw in (0, 1): variant(isA, nw)
    a.lab("g1_exit")
    a.e("s_endpgm")
    return kernel_desc(name, 256), f"; @launch kernel={name} grid=(256,1,1) block=(512,1,1) lds={G1_LDS}"
```

```python
from common import *

def gen_ln(a):
    name = "ln_kernel"
    sX, sWS = 16, 20
    sWave, sT0, sT1 = 24, 25, 26
    kernel_head(a, name)
    a.e(["s_cmp_ge_u32 s2, 256", "s_cbranch_scc1 ln_exit",
         "s_load_dwordx2 s[4:5], s[0:1], 0", "s_load_dwordx2 s[12:13], s[0:1], 72",
         "v_lshrrev_b32 v1, 6, v0", "v_and_b32 v0, 63, v0",
         f"v_readfirstlane_b32 s{sWave}, v1",
         "v_and_b32 v2, 7, v0", "v_lshrrev_b32 v3, 3, v0",
         "v_lshlrev_b32 v4, 11, v2", "v_lshl_add_u32 v4, v3, 4, v4",
         "v_lshlrev_b32 v5, 4, v2", "v_lshl_add_u32 v5, v3, 8, v5",
         f"s_lshl_b32 s{sT0}, s2, 14", f"s_lshl_b32 s{sT1}, s{sWave}, 7", f"s_add_u32 s{sT0}, s{sT0}, s{sT1}",
         "s_waitcnt lgkmcnt(0)"])
    ts(a, 0)
    srd(a, sX, 4, 2048 * 2048)
    a.e([f"buffer_load_dwordx4 v[8:11], v4, {sr(sX,4)}, s{sT0} offen",
         f"buffer_load_dwordx4 v[12:15], v4, {sr(sX,4)}, s{sT0} offen offset:1024"])
    srd(a, sWS, 12, WS_BYTES)
    a.e([f"s_lshr_b32 s{sT0}, s2, 1", f"s_lshl_b32 s{sT0}, s{sT0}, 15", f"s_and_b32 s{sT1}, s2, 1", f"s_lshl_b32 s{sT1}, s{sT1}, 7",
         f"s_add_u32 s{sT0}, s{sT0}, s{sT1}", f"s_lshl_b32 s{sT1}, s{sWave}, 11", f"s_add_u32 s{sT0}, s{sT0}, s{sT1}",
         f"s_add_u32 s{sT0}, s{sT0}, {WS_XN}", f"s_add_u32 s{sT1}, s{sT0}, 16384",
         "v_lshlrev_b32 v6, 6, v2", f"s_lshl_b32 s{sWave}, s{sWave}, 3", f"v_add_u32 v7, s{sWave}, v6",
         "v_mov_b32 v32, 0", "v_mov_b32 v33, 0", "v_mov_b32 v34, 0", "v_mov_b32 v35, 0"])
    ts(a, 1)
    for hlf in range(2):
        a.e(f"s_waitcnt vmcnt({1-hlf})")
        for i in range(4 * hlf, 4 * hlf + 4):
            a.e([f"v_lshlrev_b32 v{16+2*i}, 16, v{8+i}", f"v_and_b32 v{17+2*i}, 0xffff0000, v{8+i}",
                 f"v_add_f32 v32, v32, v{16+2*i}", f"v_add_f32 v34, v34, v{17+2*i}",
                 f"v_fmac_f32 v33, v{16+2*i}, v{16+2*i}", f"v_fmac_f32 v35, v{17+2*i}, v{17+2*i}"])
    a.e(["v_add_f32 v32, v32, v34", "v_add_f32 v33, v33, v35", "s_nop 1",
         "v_add_f32_dpp v32, v32, v32 row_ror:8 row_mask:0xf bank_mask:0xf", "v_add_f32_dpp v33, v33, v33 row_ror:8 row_mask:0xf bank_mask:0xf",
         "v_mov_b32 v34, v32", "v_mov_b32 v35, v33", "s_nop 1",
         "v_permlane16_swap_b32 v32, v34", "v_permlane16_swap_b32 v33, v35",
         "v_add_f32 v32, v32, v34", "v_add_f32 v33, v33, v35",
         "v_mov_b32 v34, v32", "v_mov_b32 v35, v33", "s_nop 1",
         "v_permlane32_swap_b32 v32, v34", "v_permlane32_swap_b32 v33, v35",
         "v_add_f32 v32, v32, v34", "v_add_f32 v33, v33, v35",
         "ds_write_b64 v7, v[32:33]", "s_waitcnt lgkmcnt(0)", "s_barrier"])
    for i in range(4): a.e(f"ds_read_b128 v[{36+4*i}:{39+4*i}], v6 offset:{16*i}")
    a.e("s_waitcnt lgkmcnt(0)")
    for i in range(4): a.e([f"v_add_f32 v{36+4*i}, v{36+4*i}, v{38+4*i}", f"v_add_f32 v{37+4*i}, v{37+4*i}, v{39+4*i}"])
    a.e(["v_add_f32 v36, v36, v40", "v_add_f32 v37, v37, v41", "v_add_f32 v44, v44, v48", "v_add_f32 v45, v45, v49",
         "v_add_f32 v36, v36, v44", "v_add_f32 v37, v37, v45",
         f"v_mul_f32 v36, {hex(f2u(1/1024))}, v36", f"v_mul_f32 v37, {hex(f2u(1/1024))}, v37",
         "v_fma_f32 v37, -v36, v36, v37", "v_max_f32 v37, 0, v37",
         "v_cvt_pk_bf16_f32 v36, v36, v37",
         "v_and_b32 v37, 0xffff0000, v36", "v_lshlrev_b32 v36, 16, v36",
         f"v_add_f32 v37, {hex(f2u(1e-5))}, v37", "v_cvt_pk_bf16_f32 v37, v37, v37", "v_and_b32 v37, 0xffff0000, v37",
         "v_sqrt_f32 v37, v37"])
    for i in range(16): a.e(f"v_sub_f32 v{16+i}, v{16+i}, v36")
    a.e(["v_cvt_pk_bf16_f32 v37, v37, v37", "v_and_b32 v37, 0xffff0000, v37", "v_rcp_f32 v37, v37"])
    for i in range(8): a.e(f"v_cvt_pk_bf16_f32 v{8+i}, v{16+2*i}, v{17+2*i}")
    for i in range(8):
        a.e([f"v_lshlrev_b32 v{16+2*i}, 16, v{8+i}", f"v_and_b32 v{17+2*i}, 0xffff0000, v{8+i}",
             f"v_mul_f32 v{16+2*i}, v37, v{16+2*i}", f"v_mul_f32 v{17+2*i}, v37, v{17+2*i}",
             f"v_cvt_pk_bf16_f32 v{8+i}, v{16+2*i}, v{17+2*i}"])
        if i == 3: a.e(f"buffer_store_dwordx4 v[8:11], v5, {sr(sWS,4)}, s{sT0} offen")
    a.e(f"buffer_store_dwordx4 v[12:15], v5, {sr(sWS,4)}, s{sT1} offen")
    ts(a, 2); ts(a, 3)
    if PROF: a.e(["s_waitcnt vmcnt(0)", f"s_lshr_b32 s{sWave}, s{sWave}, 3"])
    ts(a, 4)
    ts_dump(a, 5, sWS, sWave, 3, sT0)
    a.e("s_endpgm")
    a.lab("ln_exit")
    a.e("s_endpgm")
    return kernel_desc(name, 64), f"; @launch kernel={name} grid=(256,1,1) block=(512,1,1) lds=512"
```

```python
import struct
LOG2E = 1.4426950408889634
import struct
def f2u(x): return struct.unpack('<I', struct.pack('<f', x))[0]

WS_Q = 0
WS_K = 4 << 20
WS_V = 8 << 20
WS_ACT = 12 << 20
ACT_TB = 288 * 1024
WS_BYTES = 268435456

class Asm:
    def __init__(s): s.L = []
    def e(s, x):
        if isinstance(x, (list, tuple)):
            for y in x: s.e(y)
        else: s.L.append("    " + x)
    def lab(s, x): s.L.append(x + ":")
    def raw(s, x): s.L.append(x)
    def text(s): return "\n".join(s.L) + "\n"

def vr(a, n=1): return f"v{a}" if n == 1 else f"v[{a}:{a+n-1}]"
def sr(a, n=1): return f"s{a}" if n == 1 else f"s[{a}:{a+n-1}]"
def mfma32(d, a, b, c=None):
    cs = vr(d, 16) if c is None else (c if isinstance(c, str) else vr(c, 16))
    return f"v_mfma_f32_32x32x16_bf16 {vr(d,16)}, {vr(a,4)}, {vr(b,4)}, {cs}"
def mfma16(d, a, b, c=None):
    cs = vr(d, 4) if c is None else (c if isinstance(c, str) else vr(c, 4))
    return f"v_mfma_f32_16x16x32_bf16 {vr(d,4)}, {vr(a,4)}, {vr(b,4)}, {cs}"

def weave(mf, fill, first=0):
    n = len(mf) - first
    out = []
    k = 0
    for i, m in enumerate(mf):
        out.append(m)
        if i >= first:
            tgt = (len(fill) * (i - first + 1) + n - 1) // n
            while k < tgt:
                out.append(fill[k]); k += 1
    return out

def srd(a, R, lo, nbytes):
    a.e([f"s_mov_b32 s{R}, s{lo}", f"s_and_b32 s{R+1}, s{lo+1}, 0xffff", f"s_mov_b32 s{R+2}, {nbytes}", f"s_mov_b32 s{R+3}, 0x00020000"])

def kernel_head(a, name):
    a.raw(f".globl {name}\n.p2align 8\n.type {name},@function")
    a.lab(name)

def kernel_desc(name, nv, ns=102):
    return f""".amdhsa_kernel {name}
  .amdhsa_next_free_vgpr {nv}
  .amdhsa_next_free_sgpr {ns}
  .amdhsa_accum_offset {nv}
  .amdhsa_group_segment_fixed_size 0
  .amdhsa_kernarg_size 80
  .amdhsa_user_sgpr_count 2
  .amdhsa_user_sgpr_kernarg_segment_ptr 1
  .amdhsa_system_sgpr_workgroup_id_x 1
.end_amdhsa_kernel
"""


import os
PROF = os.environ.get('PROF', '')
def ts(a, i):
    if PROF: a.e([f"s_memtime s[{70+4*i}:{71+4*i}]", f"s_memrealtime s[{72+4*i}:{73+4*i}]"])
def ts_dump(a, n, sWS, sWave, kidx, sT):
    if not PROF: return
    a.e(["s_waitcnt lgkmcnt(0)", f"s_lshl_b32 s{sT}, s2, 3", f"s_add_u32 s{sT}, s{sT}, s{sWave}", f"s_lshl_b32 s{sT}, s{sT}, 6",
         f"s_add_u32 s{sT}, s{sT}, {(128 << 20) + kidx * (1 << 20)}", "v_mov_b32 v0, 0"])
    for i in range(n):
        a.e([f"v_mov_b32 v2, s{70+4*i}", f"v_mov_b32 v3, s{72+4*i}", f"buffer_store_dwordx2 v[2:3], v0, s[{sWS}:{sWS+3}], s{sT} offen offset:{8*i}", "s_nop 1"])
```

```python
import sys, os
from common import *
from gen_ln import gen_ln
from gen_g1 import gen_g1
from gen_at import gen_at
from gen_fin import gen_fin
from gen_af import gen_af

def build(kernels):
    a = Asm()
    descs = []; launches = []
    for g in kernels:
        d, l = g(a)
        descs.append(d); launches.append(l)
    hdr = "; generated by work/gen.py\n" + "\n".join(launches) + '\n.amdgcn_target "amdgcn-amd-amdhsa--gfx950"\n.text\n'
    return hdr + a.text() + '.section .rodata,"a"\n' + "".join(".p2align 6\n" + d for d in descs)

if __name__ == "__main__":
    out = sys.argv[1] if len(sys.argv) > 1 else "parallel_sum__softmax_full_mha__glu_gated_glu__prompt.s"
    ks = {'l': gen_ln, 'g': gen_g1, 'a': gen_at, 'f': gen_fin, 'F': gen_af}
    txt = build([ks[c] for c in os.environ.get('KS', 'lgF')])
    open(out, "w").write(txt)
    from lint import lint
    for x in lint(txt): print("HAZARD L%d->L%d %s need %d have %d\n    %s\n    %s" % x)
    print("wrote", out, len(txt), "bytes")
```

```python
from common import *
import os
NB = int(os.environ.get('AF_NB', '5'))
PRA = int(os.environ.get('AF_PRA', '1'))
PRG = int(os.environ.get('AF_PRG', '0'))
SCHED = os.environ.get('AF_SCHED', "5WeeReeD1eeee6cccce2eeee3eee4ccccn")
AFX = os.environ.get('AFX', '')
HO = 25
KV_D = 12
AF_LDS = 163840
L_CNT = 65536
L_W = 98304

def gen_af(a):
    name = "af_kernel"
    sX, sWD, sWO, sOUT, sWS, sW = 16, 20, 24, 28, 32, 36
    sWave, sMt, sNt, sT0, sT1, sCnt = 40, 41, 42, 43, 44, 45
    kernel_head(a, name)
    a.e(["s_cmp_ge_u32 s2, 256", "s_cbranch_scc1 af_exit",
         "s_load_dwordx2 s[4:5], s[0:1], 0", "s_load_dwordx2 s[6:7], s[0:1], 16", "s_load_dwordx4 s[8:11], s[0:1], 48", "s_load_dwordx2 s[12:13], s[0:1], 72",
         "v_lshrrev_b32 v1, 6, v0", "v_and_b32 v0, 63, v0",
         f"v_readfirstlane_b32 s{sWave}, v1",
         f"s_lshr_b32 s{sT1}, s2, 3",
         f"s_bfe_u32 s{sMt}, s2, 0x20001", f"s_lshl_b32 s{sMt}, s{sMt}, 2", f"s_and_b32 s{sT0}, s{sT1}, 3", f"s_add_u32 s{sMt}, s{sMt}, s{sT0}",
         "v_lshlrev_b32 v1, 4, v0",
         f"s_cmp_ge_u32 s{sWave}, 4", "s_cbranch_scc1 af_gemm"])
    VL = 1
    sHead, sTB, sK, sKs, sDst, sTile, sMode, sH, sH1, sB, sB0, sB1, sQB = range(46, 59)
    VV = 2
    QF = lambda x: 8 + 8 * x
    KF = lambda p: 24 + 8 * p
    VF = lambda p: 40 + 8 * p
    PB = 56
    SS = lambda x: 64 + 16 * x
    OO = lambda x: 96 + 16 * x
    NM = lambda x: 128 + 16 * x
    LL = lambda x: 160 + 4 * x
    SEL = 168
    a.e([f"s_setprio {PRA}",
         f"s_and_b32 s{sT0}, s2, 7", f"s_lshl_b32 s{sHead}, s{sT0}, 2", f"s_and_b32 s{sT0}, s{sT1}, 3", f"s_add_u32 s{sHead}, s{sHead}, s{sT0}",
         f"s_lshr_b32 s{sQB}, s{sT1}, 2", f"s_lshl_b32 s{sTB}, s{sQB}, 2", f"s_add_u32 s{sTB}, s{sTB}, s{sWave}", f"s_lshl_b32 s{sTB}, s{sTB}, 1",
         f"s_lshl_b32 s{sK}, s{sHead}, 17",
         f"s_lshl_b32 s{sT0}, s{sTB}, 11", f"s_add_u32 s{sT0}, s{sT0}, s{sK}",
         f"s_lshl_b32 s{sDst}, s{sWave}, 10",
         f"s_and_b32 s{sT1}, s{sDst}, 1024", f"s_add_u32 s{sK}, s{sK}, s{sT1}",
         f"s_cmp_ge_u32 s{sWave}, 2", f"s_cselect_b32 s{sT1}, {WS_V-WS_K}, 0", f"s_add_u32 s{sK}, s{sK}, s{sT1}", f"s_add_u32 s{sK}, s{sK}, {WS_K}",
         "s_waitcnt lgkmcnt(0)"])
    ts(a, 0)
    srd(a, sWS, 12, WS_BYTES)
    def kvdma(T, guard=True):
        o = []
        if guard: o += [f"s_cmp_lt_u32 s{sTile}, 64", f"s_cselect_b32 s{sKs}, s{sK}, 0x7f000000", f"s_add_u32 s{sTile}, s{sTile}, 1"]
        o += [f"s_add_u32 m0, s{sDst}, {(T & 15) * 4096}", f"s_add_u32 s{sK}, s{sK}, 2048" if guard else f"s_mov_b32 s{sKs}, s{sK}",
              f"buffer_load_dwordx4 v{VL}, {sr(sWS,4)}, s{sKs} offen lds"]
        if not guard: o += [f"s_add_u32 s{sK}, s{sK}, 2048"]
        return o
    for T in range(2): a.e(kvdma(T, False))
    for i in range(4): a.e(f"buffer_load_dwordx4 {vr(QF(0)+4*i,4)}, v{VL}, {sr(sWS,4)}, s{sT0} offen offset:{1024*i}")
    for T in range(2, KV_D): a.e(kvdma(T, False))
    a.e(f"s_mov_b32 s{sTile}, {KV_D}")
    a.e(["v_bfe_u32 v4, v0, 4, 1", f"v_mul_u32_u24 v4, {ACT_TB}, v4", "v_lshrrev_b32 v5, 5, v0", "v_lshl_add_u32 v4, v5, 8, v4",
         "v_and_b32 v5, 15, v0", f"v_lshl_add_u32 v{VV}, v5, 4, v4",
         "v_lshrrev_b32 v4, 2, v0", "v_xor_b32 v4, v4, v0", "v_bfe_u32 v4, v4, 2, 1", "v_add_u32 v4, -1, v4",
         f"v_and_b32 v{SEL}, 0x3f803f80, v4", f"v_mov_b32 v{SEL+1}, v{SEL}", f"v_mov_b32 v{SEL+2}, v{SEL}", f"v_mov_b32 v{SEL+3}, v{SEL}",
         f"v_mov_b32 v4, {L_CNT}", "v_mov_b32 v5, 0", "ds_write_b32 v4, v5"])
    for r in range(32): a.e(f"v_mov_b32 v{OO(0)+r}, 0")
    for r in range(8): a.e(f"v_mov_b32 v{LL(0)+r}, 0")
    for r in range(4): a.e([f"v_mov_b32 v{PB+4+r}, 0", f"v_mov_b32 v{VF(1)+4+r}, 0"])
    def kread(T): return [f"ds_read_b128 {vr(KF(T&1)+4*s,4)}, v{VL} offset:{(T&15)*4096+1024*s}" for s in range(2)]
    def vread(T): return [f"ds_read_b128 {vr(VF(T&1)+4*s,4)}, v{VL} offset:{(T&15)*4096+2048+1024*s}" for s in range(2)]
    bt = sorted(set((16 * i + 8) // NB for i in range(NB)))
    assert len(bt) == NB
    nextb = lambda t: min([b for b in bt if b > t] + [bt[0] + 16])
    a.e([f"s_waitcnt vmcnt({KV_D - 1 - (bt[0] + 1)}) lgkmcnt(0)", "s_barrier"])
    a.e(kread(0) + kread(1) + vread(0))
    a.e(["s_waitcnt lgkmcnt(4)"])
    for x in range(2): a.e([mfma32(SS(x), KF(0), QF(x), "0"), mfma32(SS(x), KF(0) + 4, QF(x) + 4)])
    def rowmax(S, init=False):
        o = [f"v_max3_f32 v4, v{S}, v{S+1}, v{S+2}"] + [f"v_max3_f32 v4, v4, v{S+3+2*i}, v{S+4+2*i}" for i in range(6)] + [f"v_max_f32 v4, v4, v{S+15}"]
        return o
    def negmax(x):
        return ["v_mov_b32 v5, v4", "s_nop 1", "v_permlane32_swap_b32 v4, v5", "v_max_f32 v4, v4, v5"] + [f"v_sub_f32 v{NM(x)+r}, 0, v4" for r in range(16)]
    a.e(["s_nop 7", "s_nop 1"])
    for x in range(2): a.e(rowmax(SS(x)) + negmax(x))
    for r in range(16): a.e(f"v_add_f32 v{SS(0)+r}, v{SS(0)+r}, v{NM(0)+r}")
    a.e(f"s_mov_b32 s{sCnt}, 4")
    ts(a, 1)
    a.e("s_waitcnt lgkmcnt(0)")
    a.raw(".p2align 6")
    a.lab("af_aloop")
    for u in range(32):
        t = u >> 1; x = u & 1; y = 1 - x
        S = SS(x)
        ex = [f"v_exp_f32 v{S+i}, v{S+i}" for i in range(16)]
        cv = [f"v_cvt_pk_bf16_f32 v{PB+i}, v{S+2*i}, v{S+2*i+1}" for i in range(8)]
        tp = t - 1 + x; tn = t + x
        M = {'5': mfma32(OO(y), VF(tp & 1) + 4, PB + 4), '6': mfma16(LL(y), SEL, PB + 4),
             '1': mfma32(SS(y), KF(tn & 1), QF(y), NM(y)), '2': mfma32(SS(y), KF(tn & 1) + 4, QF(y) + 4),
             '3': mfma32(OO(x), VF(t & 1), PB), '4': mfma16(LL(x), SEL, PB)}
        for c in SCHED:
            if 'a' in AFX and c not in 'WD': continue
            if c in M: a.e(M[c])
            elif c == 'e': a.e(ex.pop(0))
            elif c == 'c': a.e(cv.pop(0))
            elif c == 'n': a.e("s_nop 0")
            elif c == 'W':
                if x:
                    if t in bt: a.e([f"s_waitcnt vmcnt({t + KV_D - (nextb(t) + 1)}) lgkmcnt(0)", "s_barrier"])
                    else: a.e("s_waitcnt lgkmcnt(0)")
            elif c == 'R': a.e(kread(t + 2) if x else vread(t + 1))
            elif c == 'D':
                if not x: a.e(kvdma(t + KV_D))
        assert 'a' in AFX or (not ex and not cv)
        if u == 31: a.e([f"s_sub_u32 s{sCnt}, s{sCnt}, 1", f"s_cmp_lg_u32 s{sCnt}, 0", "s_cbranch_scc1 af_aloop"])
        else: a.e("s_nop 0")
    a.e([mfma32(OO(1), VF(1) + 4, PB + 4), mfma16(LL(1), SEL, PB + 4), "s_nop 7", "s_nop 3"])
    ts(a, 2)
    a.e([f"v_max3_f32 v4, |v{OO(0)}|, |v{OO(0)+1}|, |v{OO(0)+2}|"] + [f"v_max3_f32 v4, v4, |v{OO(0)+3+2*i}|, |v{OO(0)+4+2*i}|" for i in range(14)] + [f"v_max_f32 v4, v4, |v{OO(0)+31}|",
         f"v_mov_b32 v5, {hex(f2u(2.0**24))}",
         f"v_cmp_nlt_f32 vcc, v{LL(0)}, v5", f"v_cmp_nlt_f32 s[60:61], v{LL(1)}, v5", f"v_mov_b32 v5, {hex(f2u(2.0**126))}", "v_cmp_nlt_f32 s[62:63], v4, v5",
         "s_nop 1", "s_or_b64 vcc, vcc, s[60:61]", "s_or_b64 vcc, vcc, s[62:63]", "s_cmp_lg_u64 vcc, 0",
         "s_cbranch_scc1 af_redo"])
    def ostore(x, sb, add, sh):
        o = [f"v_rcp_f32 v4, v{LL(x)}", "s_nop 0"]
        o += [f"v_mul_f32 v{OO(x)+r}, v4, v{OO(x)+r}" for r in range(16)]
        o += [f"v_cvt_pk_bf16_f32 v{SS(x)+r}, v{OO(x)+2*r}, v{OO(x)+2*r+1}" for r in range(8)]
        o += [f"s_mul_i32 s{sT0}, s{sb}, {2*ACT_TB}", f"s_lshl_b32 s{sT1}, s{sh}, 10", f"s_add_u32 s{sT0}, s{sT0}, s{sT1}",
              f"s_add_u32 s{sT0}, s{sT0}, {WS_ACT + 112*1024 + add*2*ACT_TB}",
              f"buffer_store_dwordx4 {vr(SS(x),4)}, v{VV}, {sr(sWS,4)}, s{sT0} offen sc1",
              f"buffer_store_dwordx4 {vr(SS(x)+4,4)}, v{VV}, {sr(sWS,4)}, s{sT0} offen offset:512 sc1"]
        return o
    for x in range(2): a.e(ostore(x, sTB, x, sHead))
    a.lab("af_signal")
    a.e(["s_setprio 0", f"v_mov_b32 v4, {L_CNT}", "v_mov_b32 v5, 1", "s_mov_b64 exec, 1",
         "s_waitcnt vmcnt(0) lgkmcnt(0)", "ds_add_rtn_u32 v6, v4, v5",
         f"s_lshl_b32 s{sT0}, s{sQB}, 5", f"s_add_u32 s{sT0}, s{sT0}, s{sHead}", f"s_lshl_b32 s{sT0}, s{sT0}, 2", f"s_add_u32 s{sT0}, s{sT0}, {WS_FLAG}",
         "v_mov_b32 v4, 0",
         "s_waitcnt lgkmcnt(0)", f"v_readfirstlane_b32 s{sT1}, v6", "s_nop 1", f"s_cmp_lg_u32 s{sT1}, 3", "s_cbranch_scc1 af_nosig",
         f"buffer_store_dword v5, v4, {sr(sWS,4)}, s{sT0} offen sc1"])
    a.lab("af_nosig")
    ts(a, 3)
    a.e(["s_mov_b64 exec, -1", "v_and_b32 v4, 31, v0", "v_lshlrev_b32 v4, 2, v4",
         f"s_lshr_b32 s{sT0}, s{sMt}, 1", f"s_lshl_b32 s{sT0}, s{sT0}, 7", f"s_add_u32 s{sT0}, s{sT0}, {WS_FLAG}", f"s_mov_b32 s{sCnt}, {os.environ.get('AF_TO', '2000')}"])
    a.lab("af_poll")
    a.e([f"buffer_load_dword v5, v4, {sr(sWS,4)}, s{sT0} offen sc1", "s_waitcnt vmcnt(0)", "v_cmp_eq_u32 vcc, 0, v5", "s_nop 1",
         "s_cmp_eq_u64 vcc, 0", "s_cbranch_scc1 af_adone",
         "s_sleep 4", f"s_sub_u32 s{sCnt}, s{sCnt}, 1", f"s_cmp_lg_u32 s{sCnt}, 0", "s_cbranch_scc1 af_poll",
         f"s_mov_b32 s{sMode}, 1", f"s_mov_b32 s{sH}, 0", f"s_mov_b32 s{sH1}, 32",
         f"s_lshl_b32 s{sB0}, s{sMt}, 2", f"s_add_u32 s{sB0}, s{sB0}, s{sWave}", f"s_add_u32 s{sB1}, s{sB0}, 1", "s_branch af_slow"])
    a.lab("af_adone")
    ts(a, 4)
    a.e(["s_waitcnt vmcnt(0)", "s_barrier"])
    ts(a, 5)
    ts_dump(a, 6, sWS, sWave, 1, sT0)
    a.e("s_endpgm")
    a.lab("af_redo")
    a.e([f"s_mov_b32 s{sMode}, 0", f"s_mov_b32 s{sH}, s{sHead}", f"s_add_u32 s{sH1}, s{sHead}, 1", f"s_mov_b32 s{sB0}, s{sTB}", f"s_add_u32 s{sB1}, s{sTB}, 2"])
    a.lab("af_slow")
    a.e([f"s_mov_b32 s{sB}, s{sB0}", "s_waitcnt vmcnt(0) lgkmcnt(0)"])
    a.lab("af_slow_b")
    S = SS(1)
    a.e([f"s_lshl_b32 s{sK}, s{sH}, 17", f"s_lshl_b32 s{sT0}, s{sB}, 11", f"s_add_u32 s{sT0}, s{sT0}, s{sK}",
         f"buffer_load_dwordx4 {vr(QF(0),4)}, v{VL}, {sr(sWS,4)}, s{sT0} offen",
         f"buffer_load_dwordx4 {vr(QF(0)+4,4)}, v{VL}, {sr(sWS,4)}, s{sT0} offen offset:1024",
         f"s_add_u32 s{sK}, s{sK}, {WS_K}", f"s_mov_b32 s{sT0}, s{sK}", f"s_mov_b32 s{sCnt}, 64", "v_mov_b32 v4, 0xff800000"])
    a.lab("af_slow_p1")
    a.e([f"buffer_load_dwordx4 {vr(KF(0),4)}, v{VL}, {sr(sWS,4)}, s{sT0} offen",
         f"buffer_load_dwordx4 {vr(KF(0)+4,4)}, v{VL}, {sr(sWS,4)}, s{sT0} offen offset:1024",
         "s_waitcnt vmcnt(0)",
         mfma32(S, KF(0), QF(0), "0"), mfma32(S, KF(0) + 4, QF(0) + 4), "s_nop 7", "s_nop 3"])
    a.e([f"v_max3_f32 v4, v4, v{S+2*i}, v{S+1+2*i}" for i in range(8)])
    a.e([f"s_add_u32 s{sT0}, s{sT0}, 2048", f"s_sub_u32 s{sCnt}, s{sCnt}, 1", f"s_cmp_lg_u32 s{sCnt}, 0", "s_cbranch_scc1 af_slow_p1"])
    a.e(negmax(0))
    for r in range(16): a.e(f"v_mov_b32 v{OO(0)+r}, 0")
    for r in range(4): a.e(f"v_mov_b32 v{LL(0)+r}, 0")
    a.e([f"s_mov_b32 s{sCnt}, 64"])
    a.lab("af_slow_p2")
    a.e([f"s_add_u32 s{sT0}, s{sK}, {WS_V - WS_K}",
         f"buffer_load_dwordx4 {vr(KF(0),4)}, v{VL}, {sr(sWS,4)}, s{sK} offen",
         f"buffer_load_dwordx4 {vr(KF(0)+4,4)}, v{VL}, {sr(sWS,4)}, s{sK} offen offset:1024",
         f"buffer_load_dwordx4 {vr(VF(0),4)}, v{VL}, {sr(sWS,4)}, s{sT0} offen",
         f"buffer_load_dwordx4 {vr(VF(0)+4,4)}, v{VL}, {sr(sWS,4)}, s{sT0} offen offset:1024",
         "s_waitcnt vmcnt(0)",
         mfma32(S, KF(0), QF(0), NM(0)), mfma32(S, KF(0) + 4, QF(0) + 4), "s_nop 7", "s_nop 3"])
    a.e([f"v_exp_f32 v{S+i}, v{S+i}" for i in range(16)] + ["s_nop 0"])
    a.e([f"v_cvt_pk_bf16_f32 v{PB+i}, v{S+2*i}, v{S+2*i+1}" for i in range(8)] + ["s_nop 1"])
    a.e([mfma32(OO(0), VF(0), PB), mfma32(OO(0), VF(0) + 4, PB + 4), mfma16(LL(0), SEL, PB), mfma16(LL(0), SEL, PB + 4),
         f"s_add_u32 s{sK}, s{sK}, 2048", f"s_sub_u32 s{sCnt}, s{sCnt}, 1", f"s_cmp_lg_u32 s{sCnt}, 0", "s_nop 7", "s_nop 3", "s_cbranch_scc1 af_slow_p2"])
    a.e(ostore(0, sB, 0, sH))
    a.e(["s_waitcnt vmcnt(0)",
         f"s_add_u32 s{sB}, s{sB}, 1", f"s_cmp_lt_u32 s{sB}, s{sB1}", "s_cbranch_scc1 af_slow_b",
         f"s_add_u32 s{sH}, s{sH}, 1", f"s_cmp_lt_u32 s{sH}, s{sH1}", "s_cbranch_scc1 af_slow",
         f"s_cmp_eq_u32 s{sMode}, 0", "s_cbranch_scc1 af_signal", "s_branch af_adone"])

    sJ, sA, sAs, sWo, sWs, sI, sDw, sOut = range(46, 54)
    sMask = 54
    ACC = lambda cb, ti: 128 + 32 * ti + 16 * cb
    BF = lambda b, s, ti: 32 + 32 * b + 16 * s + 4 * ti
    AF = lambda s, cb: 16 + 8 * s + 4 * cb
    VB = lambda ti: 2 + ti
    VW = lambda i: 6 + i
    VA = lambda cb: 10 + cb
    VO = 12
    a.raw(".p2align 6")
    a.lab("af_gemm")
    a.e([f"s_setprio {PRG}",
         f"s_and_b32 s{sNt}, s2, 1", f"s_lshl_b32 s{sNt}, s{sNt}, 3", f"s_lshr_b32 s{sT0}, s{sT1}, 2", f"s_add_u32 s{sNt}, s{sNt}, s{sT0}",
         f"s_and_b32 s{sJ}, s{sWave}, 3",
         "v_lshrrev_b32 v13, 3, v0", "v_and_b32 v14, 7, v0", "v_and_b32 v15, 2, v13", "v_lshlrev_b32 v15, 1, v15", "v_xor_b32 v14, v14, v15",
         "v_lshlrev_b32 v13, 11, v13", f"v_lshl_add_u32 v{VW(0)}, v14, 4, v13"] +
        [f"v_add_u32 v{VW(i)}, {i*(16384-1024)}, v{VW(0)}" for i in range(1, 4)] +
        [f"s_lshl_b32 s{sWo}, s{sNt}, 7", f"s_lshl_b32 s{sT0}, s{sJ}, 16", f"s_add_u32 s{sWo}, s{sWo}, s{sT0}",
         f"s_lshl_b32 s{sDw}, s{sJ}, 14", f"s_add_u32 s{sDw}, s{sDw}, {L_W}",
         "v_and_b32 v13, 31, v0", "v_lshlrev_b32 v13, 11, v13", "v_lshrrev_b32 v14, 5, v0", f"v_lshl_add_u32 v{VO}, v14, 4, v13",
         f"s_lshl_b32 s{sOut}, s{sMt}, 18", f"s_add_u32 s{sOut}, s{sOut}, s{sWo}",
         "v_bfe_u32 v13, v0, 4, 1", f"v_mul_u32_u24 v13, {ACT_TB}, v13", "v_lshl_add_u32 v13, v14, 8, v13", "v_and_b32 v15, 15, v0", "v_lshl_add_u32 v13, v15, 4, v13",
         f"s_mul_i32 s{sA}, s{sMt}, {8*ACT_TB}", f"s_lshl_b32 s{sT0}, s{sJ}, 10", f"s_add_u32 s{sA}, s{sA}, s{sT0}", f"s_add_u32 s{sA}, s{sA}, {WS_ACT}"])
    for ti in range(4):
        a.e([f"s_xor_b32 s{sT0}, s{sJ}, {ti}", f"s_mul_i32 s{sT0}, s{sT0}, {2*ACT_TB}", f"v_add_u32 v{VB(ti)}, s{sT0}, v13"])
    a.e("s_waitcnt lgkmcnt(0)")
    ts(a, 0)
    srd(a, sWD, 8, 3584 * 2048)
    srd(a, sWS, 12, WS_BYTES)
    srd(a, sX, 4, 2048 * 2048)
    def wdma(sl, S, so):
        o = [[f"buffer_load_dwordx4 v{VW(i)}, {sr(S,4)}, s{so} offen offset:{1024*i} lds"] for i in range(4)]
        o[0] = [f"s_add_u32 m0, s{sDw}, {sl*4096}", "s_nop 0"] + o[0]
        return o
    def bload(b, s, so): return [f"buffer_load_dwordx4 {vr(BF(b,s,ti),4)}, v{VB(ti)}, {sr(sWS,4)}, s{so} offen offset:{512*s} sc1" for ti in range(4)]
    a.e(wdma(0, sWD, sWo)); a.e(f"s_add_u32 s{sWo}, s{sWo}, 262144")
    XT = ACC(0, 1)
    for i in range(4): a.e(f"buffer_load_dwordx4 {vr(XT+4*i,4)}, v{VO}, {sr(sX,4)}, s{sOut} offen offset:{32*i}")
    for b in range(3):
        a.e(bload(b, 0, sA)); a.e(wdma(b + 1, sWD, sWo)); a.e(bload(b, 1, sA))
        a.e([f"s_add_u32 s{sWo}, s{sWo}, 262144", f"s_add_u32 s{sA}, s{sA}, 4096"])
    srd(a, sWO, 6, 1024 * 2048)
    srd(a, sOUT, 10, 2048 * 2048)
    a.e([f"s_mov_b32 s{sW+3}, 0x00020000"])
    mask = ((1 << (4 * NB + 1)) - 1) | (1 << HO)
    a.e([f"s_mov_b32 s{sMask}, {hex(mask & 0xffffffff)}", f"s_mov_b32 s{sMask+1}, {hex(mask >> 32)}", f"s_mov_b32 s{sI}, 0"])
    a.e(["v_bfe_u32 v13, v0, 2, 2", "v_lshl_add_u32 v14, v14, 2, v13", "v_lshlrev_b32 v14, 7, v14",
         "v_lshrrev_b32 v13, 1, v13", "v_lshl_add_u32 v14, v13, 6, v14",
         "v_bfe_u32 v13, v0, 4, 1", "v_lshl_add_u32 v14, v13, 5, v14",
         "v_and_b32 v13, 1, v0", "v_lshl_add_u32 v14, v13, 4, v14", "v_bfe_u32 v13, v0, 1, 1", "v_lshl_add_u32 v14, v13, 3, v14",
         f"v_add_u32 v{VA(0)}, s{sDw}, v14", f"v_xor_b32 v{VA(1)}, 64, v{VA(0)}"])
    for r in range(ACC(0, 1) + 16, 256): a.e(f"v_mov_b32 v{r}, 0")
    def aread(s, cb, sl): return [f"ds_read_b64_tr_b16 {vr(AF(s,cb)+2*hf,2)}, v{VA(cb)} offset:{sl*4096 + 1024*s + 2048*hf}" for hf in range(2)]
    a.e("s_waitcnt vmcnt(40)")
    for s in range(2):
        for cb in range(2): a.e(aread(s, cb, 0))
    a.e("s_waitcnt vmcnt(36)")
    for i in range(16):
        a.e([f"v_lshlrev_b32 v{ACC(0,0)+2*i}, 16, v{XT+i}", f"v_and_b32 v{ACC(0,0)+2*i+1}, 0xffff0000, v{XT+i}"])
    for i in range(16): a.e(f"v_mov_b32 v{XT+i}, 0")
    ts(a, 1)
    if PROF: a.e("s_waitcnt lgkmcnt(0)")
    a.raw(".p2align 6")
    a.lab("af_gloop")
    for k in range(12):
        b = k % 3; sl = k & 3; nx = (k + 1) & 3
        mm = lambda s, cb: [mfma32(ACC(cb, ti), AF(s, cb), BF(b, s, ti)) if 'g' not in AFX else [] for ti in range(4)]
        if PROF and k == HO % 12:
            a.e([f"s_cmp_lg_u32 s{sI}, {HO}", f"s_cbranch_scc1 af_gp1"]); ts(a, 2); a.e("s_waitcnt lgkmcnt(0)"); a.lab("af_gp1")
        a.e([f"s_bitcmp0_b64 s[{sMask}:{sMask+1}], s{sI}", f"s_cbranch_scc1 af_gnb{k}", "s_barrier"])
        a.lab(f"af_gnb{k}")
        if PROF and k == HO % 12:
            a.e([f"s_cmp_lg_u32 s{sI}, {HO}", f"s_cbranch_scc1 af_gp2"]); ts(a, 3); a.e("s_waitcnt lgkmcnt(0)"); a.lab("af_gp2")
        a.e([f"s_cmp_lt_u32 s{sI}, 24",
             f"s_cselect_b32 s{sW}, s{sWD}, s{sWO}", f"s_cselect_b32 s{sW+1}, s{sWD+1}, s{sWO+1}", f"s_cselect_b32 s{sW+2}, s{sWD+2}, s{sWO+2}",
             f"s_cselect_b32 s{sT0}, 0, {28*262144}", f"s_sub_u32 s{sWs}, s{sWo}, s{sT0}",
             f"s_cmp_lt_u32 s{sI}, 33", f"s_cselect_b32 s{sAs}, s{sA}, 0x7f000000",
             f"s_add_u32 s{sA}, s{sA}, 4096", f"s_add_u32 s{sWo}, s{sWo}, 262144", f"s_add_u32 s{sI}, s{sI}, 1"])
        a.e("s_waitcnt vmcnt(28) lgkmcnt(6)")
        a.e(mm(0, 0)); a.e(aread(0, 0, nx))
        a.e("s_waitcnt lgkmcnt(6)")
        bl = bload(b, 0, sAs)
        for ti, m in enumerate(mm(0, 1)): a.e(m); a.e(bl[ti])
        a.e(aread(0, 1, nx))
        a.e("s_waitcnt vmcnt(28) lgkmcnt(4)")
        wd = wdma(sl, sW, sWs)
        for ti, m in enumerate(mm(1, 0)): a.e(m); a.e(wd[ti])
        a.e(aread(1, 0, nx))
        bl = bload(b, 1, sAs)
        for ti, m in enumerate(mm(1, 1)): a.e(m); a.e(bl[ti])
        a.e(aread(1, 1, nx))
    a.e([f"s_cmp_lt_u32 s{sI}, 36", "s_cbranch_scc1 af_gloop"])
    ts(a, 4)
    for i in range(1, 4):
        a.e([f"s_xor_b32 s{sT0}, s{sJ}, {i}", f"s_mul_i32 s{sT0}, s{sT0}, 24576", f"s_add_u32 s{sT0}, s{sT0}, {(i-1)*8192}", f"v_add_u32 v{4+i}, s{sT0}, v{VL}"])
    a.e([f"s_mul_i32 s{sT0}, s{sJ}, 24576", f"v_add_u32 v4, s{sT0}, v{VL}", "s_nop 7"])
    for i in range(1, 4):
        for q in range(8): a.e(f"ds_write_b128 v{4+i}, {vr(ACC(0,i)+4*q,4)} offset:{1024*q}")
    a.e(["s_waitcnt lgkmcnt(0)", "s_barrier"])
    for q in range(8):
        for i in range(1, 4): a.e(f"ds_read_b128 {vr(ACC(0,i)+4*q,4)}, v4 offset:{(i-1)*8192+1024*q}")
    a.e("s_waitcnt vmcnt(0)")
    for q2 in range(4):
        a.e(f"s_waitcnt lgkmcnt({min(15, 6*(3-q2))})")
        for r in range(8 * q2, 8 * q2 + 8):
            a.e([f"v_add_f32 v{ACC(0,0)+r}, v{ACC(0,0)+r}, v{ACC(0,1)+r}", f"v_add_f32 v{ACC(0,2)+r}, v{ACC(0,2)+r}, v{ACC(0,3)+r}"])
        for r in range(8 * q2, 8 * q2 + 8): a.e(f"v_add_f32 v{ACC(0,0)+r}, v{ACC(0,0)+r}, v{ACC(0,2)+r}")
        for r in range(4): a.e(f"v_cvt_pk_bf16_f32 v{16+4*q2+r}, v{ACC(0,0)+8*q2+2*r}, v{ACC(0,0)+8*q2+2*r+1}")
        a.e(f"buffer_store_dwordx4 {vr(16+4*q2,4)}, v{VO}, {sr(sOUT,4)}, s{sOut} offen offset:{32*q2}")
    if PROF: a.e("s_waitcnt vmcnt(0)")
    ts(a, 5)
    ts_dump(a, 6, sWS, sWave, 1, sT0)
    a.e("s_endpgm")
    a.lab("af_exit")
    a.e("s_endpgm")
    return kernel_desc(name, 256), f"; @launch kernel={name} grid=(256,1,1) block=(512,1,1) lds={AF_LDS}"
```

```python
from common import *
import os
G1X = os.environ.get('G1X', '')
ST = os.environ.get('ST', '')

G1_WST = 20480
G1_XR = 4 * G1_WST
G1_XST = 16384
G1_PF = G1_XR + 4 * G1_XST
G1_LDS = G1_PF + 4096
PF = os.environ.get('G1PF', '1') == '1'

def gen_g1(a):
    name = "g1_kernel"
    ACC = lambda b, tb: 96 + (b * 4 + tb) * 4
    AF = lambda b: 16 + 4 * b
    BF = lambda p, tb: 56 + 16 * p + 4 * tb
    VA = 1; VB = 11; VD = 88
    sWQ, sWG, sWU, sGU, sWS = 20, 24, 28, 32, 36
    sWave, sMw, sNw, sMt, sNt, sP, sIsA, sF0 = 40, 41, 42, 43, 44, 45, 46, 47
    sQ, sG, sT0, sT1, sT2, sCnt, sDst, sXs, sPf, sPd = 48, 49, 50, 51, 52, 53, 54, 55, 56, 57
    kernel_head(a, name)
    a.e(["s_cmp_ge_u32 s2, 256", "s_cbranch_scc1 g1_exit",
         "s_load_dwordx2 s[6:7], s[0:1], 8", "s_load_dwordx4 s[8:11], s[0:1], 32", "s_load_dwordx2 s[12:13], s[0:1], 72",
         "s_load_dwordx2 s[14:15], s[0:1], 16", "s_load_dwordx2 s[16:17], s[0:1], 48",
         "v_lshrrev_b32 v12, 6, v0", "v_and_b32 v0, 63, v0",
         f"v_readfirstlane_b32 s{sWave}, v12",
         f"s_and_b32 s{sT0}, s2, 7", f"s_lshr_b32 s{sT1}, s2, 3",
         f"s_lshl_b32 s{sNt}, s{sT0}, 2", f"s_and_b32 s{sT0}, s{sT1}, 3", f"s_add_u32 s{sNt}, s{sNt}, s{sT0}",
         f"s_lshr_b32 s{sMt}, s{sT1}, 2",
         f"s_lshr_b32 s{sP}, s{sNt}, 1",
         f"s_xor_b32 s{sIsA}, s{sNt}, s{sP}", f"s_and_b32 s{sIsA}, s{sIsA}, 1",
         f"s_mul_i32 s{sF0}, s{sP}, 224",
         f"s_lshl_b32 s{sT0}, s{sIsA}, 5", f"s_add_u32 s{sT0}, s{sT0}, 96",
         f"s_bitcmp1_b32 s{sNt}, 0", f"s_cselect_b32 s{sT0}, s{sT0}, 0", f"s_add_u32 s{sF0}, s{sF0}, s{sT0}",
         f"s_and_b32 s{sMw}, s{sWave}, 3", f"s_lshr_b32 s{sNw}, s{sWave}, 2",
         f"s_lshl_b32 s{sT0}, s{sIsA}, 1", f"s_add_u32 s{sT0}, s{sT0}, s{sNw}"])
    for v in range(1, 4):
        a.e([f"s_cmp_eq_u32 s{sT0}, {v}", f"s_cbranch_scc1 g1_v{v}"])

    def variant(isA, nw):
        V = isA * 2 + nw
        if isA: S0, SG, RO_G, RO_U = 256, 192, 8192, 14336
        else: S0, SG, RO_G, RO_U = 128, 256, 4096, 12288
        if isA: qk = list(range(6)) if nw == 0 else [6, 7]; quads = [0] if nw == 0 else [1, 2]
        else: qk = [2 * nw, 2 * nw + 1]; quads = [2 * nw, 2 * nw + 1]
        blocks = [('q', i) for i in qk]
        for q in quads: blocks += [('g', 2 * q), ('g', 2 * q + 1), ('u', 2 * q), ('u', 2 * q + 1)]
        stride = [S0 if k == 'q' else SG for k, _ in blocks]
        a.lab(f"g1_v{V}")
        def slot_decode(dst, S, base_s, gstride, kind):
            o = [f"v_add_u32 v12, {base_s}, v0"]
            if S == 192:
                o += ["v_mul_u32_u24 v13, 43691, v12", "v_lshrrev_b32 v13, 19, v13", "v_mul_u32_u24 v14, 12, v13", "v_sub_u32 v14, v12, v14",
                      "v_bfe_u32 v15, v13, 3, 1", "v_lshlrev_b32 v15, 1, v15", "v_xor_b32 v14, v14, v15"]
            elif S == 256:
                o += ["v_lshrrev_b32 v13, 4, v12", "v_and_b32 v14, 15, v12", "v_and_b32 v15, 3, v13", "v_lshlrev_b32 v15, 1, v15", "v_xor_b32 v14, v14, v15",
                      "v_and_b32 v15, 8, v13", "v_xor_b32 v14, v14, v15"]
            else:
                o += ["v_lshrrev_b32 v13, 3, v12", "v_and_b32 v14, 7, v12", "v_and_b32 v15, 2, v13", "v_xor_b32 v14, v14, v15",
                      "v_bfe_u32 v15, v13, 3, 1", "v_lshlrev_b32 v15, 2, v15", "v_xor_b32 v14, v14, v15"]
            o += [f"v_mul_u32_u24 v13, {gstride}, v13"]
            if kind == 'qk':
                o += ["v_lshrrev_b32 v15, 3, v14", "v_lshl_add_u32 v13, v15, 11, v13", "v_and_b32 v14, 7, v14"]
            o += [f"v_lshl_add_u32 v{dst}, v14, 4, v13"]
            return o
        if nw == 0:
            a.e([f"s_lshl_b32 s{sT0}, s{sMw}, 6", f"s_lshl_b32 s{sDst}, s{sMw}, 10"])
            if isA: plan = [('q', 0), ('q', 256), ('g', 0), ('gu', None), ('u', 128)]
            else: plan = [('q', 0), ('g', 0), ('g', 256), ('u', 0), ('u', 256)]
            for i, (k, sb) in enumerate(plan):
                if k == 'gu':
                    a.e([f"s_cmp_lt_u32 s{sMw}, 2", f"s_cselect_b32 s{sT1}, 384, 0", f"s_add_u32 s{sT1}, s{sT1}, s{sT0}", f"s_sub_u32 s{sT1}, s{sT1}, 128"])
                    a.e(slot_decode(VD + i, SG, f"s{sT1}", 7168, 'g'))
                else:
                    a.e([f"s_add_u32 s{sT1}, s{sT0}, {sb}"])
                    if k == 'q': a.e(slot_decode(VD + i, S0, f"s{sT1}", 6144, 'qk' if isA else 'v'))
                    else: a.e(slot_decode(VD + i, SG, f"s{sT1}", 7168, 'g'))
            srds = [{'q': sWQ, 'g': sWG, 'u': sWU, 'gu': sGU}[k] for k, _ in plan]
            soffs = [sQ if k == 'q' else sG for k, _ in plan]
            a.e([f"s_lshl_b32 s{sQ}, s{sP}, 7"] + ([] if isA else [f"s_add_u32 s{sQ}, s{sQ}, 4096"]) + [f"s_lshl_b32 s{sG}, s{sF0}, 1"])
            a.e("s_waitcnt lgkmcnt(0)")
            ts(a, 0)
            srd(a, sWQ, 6, 1024 * 6144)
            srd(a, sWG, 8, 1024 * 7168)
            srd(a, sWU, 10, 1024 * 7168)
            if isA:
                a.e([f"s_cmp_lt_u32 s{sMw}, 2", f"s_cselect_b32 s{sGU}, s{sWG}, s{sWU}", f"s_cselect_b32 s{sGU+1}, s{sWG+1}, s{sWU+1}",
                     f"s_mov_b32 s{sGU+2}, {1024*7168}", f"s_mov_b32 s{sGU+3}, 0x00020000"])
            def dma(sl):
                o = [[f"s_add_u32 m0, s{sDst}, {sl*G1_WST + 4096*i}", "s_nop 0", f"buffer_load_dwordx4 v{VD+i}, {sr(srds[i],4)}, s{soffs[i]} offen lds"] for i in range(5)]
                o[-1] = o[-1] + [f"s_add_u32 s{sQ}, s{sQ}, {32*6144}", f"s_add_u32 s{sG}, s{sG}, {32*7168}"]
                return o
            ND = 5
            for st in range(4): a.e(dma(st))
            srd(a, sWS, 12, WS_BYTES)
        else:
            a.e([f"v_lshlrev_b32 v{VD}, 4, v0"] + [f"v_add_u32 v{VD+i}, {i*(32768-1024)}, v{VD}" for i in range(1, 4)])
            a.e([f"s_lshl_b32 s{sXs}, s{sMt}, 19", f"s_lshl_b32 s{sT0}, s{sMw}, 17", f"s_add_u32 s{sXs}, s{sXs}, s{sT0}", f"s_add_u32 s{sXs}, s{sXs}, {WS_XN}",
                 f"s_lshl_b32 s{sDst}, s{sMw}, 12", f"s_add_u32 s{sDst}, s{sDst}, {G1_XR}", "s_waitcnt lgkmcnt(0)"])
            ts(a, 0)
            srd(a, sWS, 12, WS_BYTES)
            def dma(sl):
                o = [[f"buffer_load_dwordx4 v{VD+i}, {sr(sWS,4)}, s{sXs} offen offset:{1024*i} lds"] for i in range(4)]
                o[0] = [f"s_add_u32 m0, s{sDst}, {sl*G1_XST}", "s_nop 0"] + o[0]
                o[-1] = o[-1] + [f"s_add_u32 s{sXs}, s{sXs}, 1024"]
                return o
            ND = 4
            for st in range(4): a.e(dma(st))
            if PF:
                srd(a, sWQ, 16, 3584 * 2048)
                srd(a, sWG, 14, 1024 * 2048)
                a.e([f"s_mov_b32 s{sWU+3}, 0x00020000", f"s_lshl_b32 s{sT0}, s2, 2", f"s_add_u32 s{sT0}, s{sT0}, s{sMw}",
                     f"s_mul_i32 s{sQ}, s{sT0}, 7168", f"s_lshl_b32 s{sG}, s{sT0}, 11", f"s_sub_u32 s{sG}, s{sG}, 7168", f"s_mov_b32 s{sPf}, 0",
                     f"s_lshl_b32 s{sPd}, s{sMw}, 10", f"s_add_u32 s{sPd}, s{sPd}, {G1_PF}"])
                pf = [f"s_cmp_lt_u32 s{sPf}, 7",
                      f"s_cselect_b32 s{sWU}, s{sWQ}, s{sWG}", f"s_cselect_b32 s{sWU+1}, s{sWQ+1}, s{sWG+1}", f"s_cselect_b32 s{sWU+2}, s{sWQ+2}, s{sWG+2}",
                      f"s_cselect_b32 s{sT0}, s{sQ}, s{sG}", f"s_cmp_lt_u32 s{sPf}, 9", f"s_cselect_b32 s{sT0}, s{sT0}, 0x7f000000",
                      f"s_mov_b32 m0, s{sPd}", f"s_add_u32 s{sQ}, s{sQ}, 1024", f"s_add_u32 s{sG}, s{sG}, 1024", f"s_add_u32 s{sPf}, s{sPf}, 1",
                      f"buffer_load_dwordx4 v{VD}, {sr(sWU,4)}, s{sT0} offen lds"]
        a.e(["v_bfe_u32 v12, v0, 2, 2", "v_lshrrev_b32 v13, 4, v0", "v_lshl_add_u32 v14, v13, 3, v12", "v_and_b32 v15, 3, v0", "v_lshlrev_b32 v15, 3, v15",
             "v_and_b32 v13, 1, v13"])
        for S in sorted(set(stride)):
            if S == 256: a.e(["v_lshl_add_u32 v93, v13, 2, v12"])
            elif S == 192: a.e(["v_mov_b32 v93, v13"])
            else: a.e(["v_lshrrev_b32 v93, 1, v12", "v_lshl_add_u32 v93, v13, 1, v93"])
            a.e(["v_lshlrev_b32 v93, 5, v93", f"v_mul_u32_u24 v94, {S}, v14", "v_add_u32 v94, v94, v15"])
            for b, (k, idx) in enumerate(blocks):
                if stride[b] != S: continue
                ro = {'q': 0, 'g': RO_G, 'u': RO_U}[k]
                a.e([f"v_xor_b32 v95, {32*idx}, v93", f"v_add_u32 v95, {ro}, v95", f"v_add_u32 v{VA+b}, v94, v95"])
        a.e([f"s_lshl_b32 s{sT0}, s{sMw}, 12", f"s_add_u32 s{sT0}, s{sT0}, {G1_XR}", f"v_lshlrev_b32 v{VB}, 4, v0", f"v_add_u32 v{VB}, s{sT0}, v{VB}"])
        def aread(b, sl):
            return [f"ds_read_b64_tr_b16 {vr(AF(b)+2*h,2)}, v{VA+b} offset:{sl*G1_WST + 4*h*stride[b]}" for h in range(2)]
        def bread(p, sl):
            return [f"ds_read_b128 {vr(BF(p,tb),4)}, v{VB} offset:{sl*G1_XST + 1024*tb}" for tb in range(4)]
        def mm(b, tb, p, c=None):
            if blocks[b][0] == 'q' and not isA: return mfma16(ACC(b, tb), BF(p, tb), AF(b), c)
            return mfma16(ACC(b, tb), AF(b), BF(p, tb), c)
        a.e([f"s_waitcnt vmcnt({3*ND})", "s_barrier"])
        ts(a, 1)
        a.e(bread(0, 0))
        for b in range(10): a.e(aread(b, 0))
        def stage(sl, first=False, dmas=True, reads=True, vm=2, ex=1):
            usepf = PF and nw == 1
            p = sl & 1; nx = (sl + 1) & 3
            c = "0" if first else None
            a.e("s_waitcnt lgkmcnt(15)")
            a.e([mm(0, tb, p, c) for tb in range(4)])
            if reads:
                a.e(["s_waitcnt lgkmcnt(0)" if vm is None else f"s_waitcnt vmcnt({vm*ND + (ex if usepf else 0)}) lgkmcnt(0)"] + ([] if 'b' in G1X else ["s_barrier"]))
            else: a.e("s_waitcnt lgkmcnt(0)")
            dm = dma(sl) if dmas and 'm' not in G1X else []
            if dm and usepf and not (sl & 1): dm = dm + [pf]
            br = bread(1 - p, nx) if reads and 'r' not in G1X else []
            for b in range(1, 10):
                ar = aread(b - 1, nx) if reads and 'r' not in G1X else [[], []]
                f = [[ar[0]], [ar[1]], [], []]
                if b <= 2 and br: f[2] = [br[2*(b-1)]]; f[3] = [br[2*(b-1)+1]]
                if 3 <= b < 3 + len(dm): f[2] = dm[b - 3]
                for tb in range(4):
                    a.e(f[tb]); a.e(mm(b, tb, p, c))
            if reads and 'r' not in G1X: a.e(aread(9, nx))
        for sl in range(4): stage(sl, first=(sl == 0), ex=(0 if sl == 0 else 1))
        a.e(f"s_mov_b32 s{sCnt}, 6")
        a.raw(".p2align 6")
        a.lab(f"g1_loop{V}")
        for sl in range(4): stage(sl)
        a.e([f"s_sub_u32 s{sCnt}, s{sCnt}, 1", f"s_cmp_lg_u32 s{sCnt}, 0", f"s_cbranch_scc1 g1_loop{V}"])
        stage(0, dmas=False, vm=2); stage(1, dmas=False, vm=1, ex=0); stage(2, dmas=False, vm=0, ex=0); stage(3, dmas=False, reads=False)
        ts(a, 2)
        a.e(["v_lshlrev_b32 v1, 4, v0",
             "v_lshrrev_b32 v12, 4, v0", "v_lshlrev_b32 v12, 9, v12", "v_and_b32 v13, 15, v0", "v_lshl_add_u32 v2, v13, 4, v12",
             "v_bfe_u32 v13, v0, 3, 1", "v_lshl_add_u32 v12, v13, 8, v12", "v_and_b32 v13, 7, v0", "v_lshl_add_u32 v3, v13, 4, v12",
             f"s_mov_b32 s{sT2}, {hex(f2u(-LOG2E))}", f"s_mov_b32 s{sCnt}, {hex(f2u(LOG2E * 32 ** -0.5))}",
             f"s_lshl_b32 s{sT0}, s{sMt}, 3", f"s_lshl_b32 s{sT1}, s{sMw}, 1", f"s_add_u32 s{sT0}, s{sT0}, s{sT1}",
             f"s_lshl_b32 s{sQ}, s{sT0}, 11", f"s_lshl_b32 s{sT1}, s{sP}, 18", f"s_add_u32 s{sQ}, s{sQ}, s{sT1}",
             f"s_mul_i32 s{sG}, s{sT0}, {2*ACT_TB}", f"s_lshl_b32 s{sT1}, s{sF0}, 5", f"s_add_u32 s{sG}, s{sG}, s{sT1}",
             f"s_add_u32 s{sG}, s{sG}, {WS_ACT}"])
        if V == 0:
            a.e([f"s_or_b32 s{sT0}, s2, s{sWave}", f"s_cbranch_scc1 g1_noz"] + [f"v_mov_b32 v{4+i}, 0" for i in range(4)] +
                [f"s_mov_b32 s{sT0}, {WS_FLAG}", f"buffer_store_dwordx4 v[4:7], v1, {sr(sWS,4)}, s{sT0} offen"])
            a.lab("g1_noz")
        tmp = [16 + 4 * i for i in range(18)]
        ti = [0]
        def T():
            t = tmp[ti[0] % len(tmp)]; ti[0] += 1; return t
        for hp in range(len(qk) // 2):
            b0 = 2 * hp; idx = qk[b0] >> 1
            if isA:
                isq = idx < 2
                a.e(f"s_add_u32 s{sT0}, s{sQ}, {(WS_Q if isq else WS_K) + (idx & 1) * 131072}")
                for tb in range(4):
                    t = T()
                    for u in range(2):
                        D = ACC(b0 + u, tb)
                        if isq: a.e([f"v_mul_f32 v{D+j}, s{sCnt}, v{D+j}" for j in range(4)])
                        a.e([f"v_cvt_pk_bf16_f32 v{t+2*u+j}, v{D+2*j}, v{D+2*j+1}" for j in range(2)])
                    off = (tb >> 1) * 2048 + (tb & 1) * (256 if isq else 128)
                    a.e(f"buffer_store_dwordx4 {vr(t,4)}, v{2 if isq else 3}, {sr(sWS,4)}, s{sT0} offen offset:{off}{ST}")
            else:
                a.e(f"s_add_u32 s{sT0}, s{sQ}, {WS_V + (idx & 1) * 131072}")
                for db in range(2):
                    for i in range(2):
                        t = T()
                        for u in range(2):
                            D = ACC(b0 + db, 2 * i + u)
                            a.e([f"v_cvt_pk_bf16_f32 v{t+2*u+j}, v{D+2*j}, v{D+2*j+1}" for j in range(2)])
                        a.e(f"buffer_store_dwordx4 {vr(t,4)}, v3, {sr(sWS,4)}, s{sT0} offen offset:{i*2048 + db*128}{ST}")
        for qi, q in enumerate(quads):
            b0 = len(qk) + 4 * qi
            for tb in range(4):
                t = T()
                G = [ACC(b0 + u, tb) + j for u in range(2) for j in range(4)]
                U = [ACC(b0 + 2 + u, tb) + j for u in range(2) for j in range(4)]
                a.e([f"v_mul_f32 v{g}, s{sT2}, v{g}" for g in G])
                a.e([f"v_exp_f32 v{g}, v{g}" for g in G])
                a.e([f"v_add_f32 v{g}, 1.0, v{g}" for g in G])
                a.e([f"v_rcp_f32 v{g}, v{g}" for g in G])
                a.e([f"v_mul_f32 v{g}, v{g}, v{u}" for g, u in zip(G, U)])
                a.e([f"v_cvt_pk_bf16_f32 v{t+j}, v{G[2*j]}, v{G[2*j+1]}" for j in range(4)])
                a.e(f"s_add_u32 s{sT0}, s{sG}, {tb*ACT_TB + q*1024}")
                a.e(f"buffer_store_dwordx4 {vr(t,4)}, v1, {sr(sWS,4)}, s{sT0} offen{ST}")
        ts(a, 3)
        if PROF: a.e("s_waitcnt vmcnt(0)")
        ts(a, 4)
        ts_dump(a, 5, sWS, sWave, 0, sT0)
        a.e("s_endpgm")

    for isA in (0, 1):
        for nw in (0, 1): variant(isA, nw)
    a.lab("g1_exit")
    a.e("s_endpgm")
    return kernel_desc(name, 256), f"; @launch kernel={name} grid=(256,1,1) block=(512,1,1) lds={G1_LDS}"
```

```python
from common import *
import os
PRA = int(os.environ.get('AF_PRA', '1'))
PRG = int(os.environ.get('AF_PRG', '0'))
SCHED = os.environ.get('AF_SCHED', "5ee6eeeeeeeeccccW1eee2eee3cccc4R")
AFX = os.environ.get('AFX', '')
BH = [int(v) for v in os.environ.get('AF_BH', '4,11,17,24,30,37,43,50').split(',')]
PRE = int(os.environ.get('AF_PRE', '4'))
NOB = 24
AF_LDS = 163840
L_E = 65536
L_M = 65536 + 7 * 4096
L_W = 98304
M_C1, M_HW, M_CW1, M_CW2, M_F1, M_F2 = 0, 4, 8, 12, 16, 32

def wo_slot(h):
    if h < 7: return L_E + 4096 * h
    if h < 23: return 4096 * (h - 7)
    if h < 31: return L_W + 16384 * (((h - 23) >> 1) ^ 2) + 8192 + 4096 * ((h - 23) & 1)
    return L_W + 4096

class VM:
    def __init__(s): s.n = 0; s.last = {}
    def op(s, tag): s.n += 1; s.last[tag] = s.n
    def cnt(s, *tags): return min(63, s.n - max(s.last[t] for t in tags))

def gen_af(a):
    name = "af_kernel"
    sX, sWD, sWO, sOUT, sWS = 16, 20, 24, 28, 32
    sWave, sMt, sNt, sT0, sT1, sCnt, sHead, sJ, sK, sDst, sOut = range(40, 51)
    kernel_head(a, name)
    a.e(["s_cmp_ge_u32 s2, 256", "s_cbranch_scc1 af_exit",
         "s_load_dwordx2 s[4:5], s[0:1], 0", "s_load_dwordx2 s[6:7], s[0:1], 16", "s_load_dwordx4 s[8:11], s[0:1], 48", "s_load_dwordx2 s[12:13], s[0:1], 72",
         "v_lshrrev_b32 v1, 6, v0", "v_and_b32 v0, 63, v0",
         f"v_readfirstlane_b32 s{sWave}, v1",
         f"s_lshr_b32 s{sT1}, s2, 3", f"s_and_b32 s{sT1}, s{sT1}, 3",
         f"s_and_b32 s{sHead}, s2, 7", f"s_lshl_b32 s{sHead}, s{sHead}, 2", f"s_add_u32 s{sHead}, s{sHead}, s{sT1}",
         f"s_bfe_u32 s{sMt}, s2, 0x20001", f"s_lshl_b32 s{sMt}, s{sMt}, 2", f"s_add_u32 s{sMt}, s{sMt}, s{sT1}",
         "v_lshlrev_b32 v1, 4, v0",
         f"s_and_b32 s{sJ}, s{sWave}, 3",
         f"s_lshl_b32 s{sDst}, s{sJ}, 13", f"s_lshl_b32 s{sK}, s{sHead}, 17", f"s_and_b32 s{sT0}, s{sDst}, 8192", f"s_add_u32 s{sK}, s{sK}, s{sT0}",
         f"s_cmp_ge_u32 s{sJ}, 2", f"s_cselect_b32 s{sT0}, {WS_V}, 0", f"s_max_u32 s{sT0}, s{sT0}, {WS_K}", f"s_add_u32 s{sK}, s{sK}, s{sT0}",
         f"s_and_b32 s{sNt}, s2, 1", f"s_lshl_b32 s{sNt}, s{sNt}, 3", f"s_lshr_b32 s{sT0}, s2, 5", f"s_add_u32 s{sNt}, s{sNt}, s{sT0}",
         f"s_cmp_ge_u32 s{sWave}, 4", "s_cbranch_scc1 af_gemm"])
    VL = 1
    def kvdma(p):
        o = []
        for hf in range(2):
            g = [[f"buffer_load_dwordx4 v{VL}, {sr(sWS,4)}, s{sK} offen offset:{1024*i} lds"] for i in range(4)]
            g[0] = [f"s_add_u32 m0, s{sDst}, {(p & 1) * 32768 + hf * 4096}", "s_nop 0"] + g[0]
            g[3] = g[3] + [f"s_add_u32 s{sK}, s{sK}, {4096 if hf == 0 else 12288}"]
            o += g
        return o
    def act_lane(d):
        return ["v_bfe_u32 v4, v0, 4, 1", f"v_mul_u32_u24 v4, {ACT_TB}, v4", "v_lshrrev_b32 v5, 5, v0", "v_lshl_add_u32 v4, v5, 8, v4",
                "v_and_b32 v5, 15, v0", f"v_lshl_add_u32 v{d}, v5, 4, v4"]
    def wread_lane(d):
        return ["v_lshrrev_b32 v5, 5, v0", "v_bfe_u32 v4, v0, 2, 2", "v_lshl_add_u32 v5, v5, 2, v4", "v_lshlrev_b32 v5, 7, v5",
                "v_lshrrev_b32 v4, 1, v4", "v_lshl_add_u32 v5, v4, 6, v5",
                "v_bfe_u32 v4, v0, 4, 1", "v_lshl_add_u32 v5, v4, 5, v5",
                "v_and_b32 v4, 1, v0", "v_lshl_add_u32 v5, v4, 4, v5", "v_bfe_u32 v4, v0, 1, 1", f"v_lshl_add_u32 v{d}, v4, 3, v5"]
    def spin(lab, off, val, vaddr=6, cmp="lt"):
        a.lab(lab)
        a.e([f"ds_read_b32 v7, v{vaddr} offset:{off}", "s_waitcnt lgkmcnt(0)", f"v_readfirstlane_b32 s{sT1}, v7", "s_nop 0",
             f"s_cmp_lt_u32 s{sT1}, {val}", f"s_cbranch_scc1 {lab}"])

    sTB, sMode, sH, sH1, sB, sB0, sB1, sQB, sO = range(51, 60)
    VV = 2; VO = 3
    QF = lambda x: 8 + 8 * x
    KF = lambda p: 24 + 8 * p
    VF = lambda p: 40 + 8 * p
    PB = 56
    SS = lambda x: 64 + 16 * x
    OO = lambda x: 96 + 16 * x
    NM = lambda x: 128 + 16 * x
    LL = lambda x: 160 + 4 * x
    SEL = 168
    XR = 176
    a.e([f"s_setprio {PRA}",
         f"s_lshr_b32 s{sQB}, s2, 5", f"s_lshl_b32 s{sTB}, s{sQB}, 2", f"s_add_u32 s{sTB}, s{sTB}, s{sWave}", f"s_lshl_b32 s{sTB}, s{sTB}, 1",
         f"s_lshl_b32 s{sT0}, s{sTB}, 11", f"s_lshl_b32 s{sT1}, s{sHead}, 17", f"s_add_u32 s{sT0}, s{sT0}, s{sT1}",
         "s_waitcnt lgkmcnt(0)"])
    ts(a, 0)
    srd(a, sWS, 12, WS_BYTES)
    kv = kvdma(0)
    a.e(kv[:2])
    for i in range(4): a.e(f"buffer_load_dwordx4 {vr(QF(0)+4*i,4)}, v{VL}, {sr(sWS,4)}, s{sT0} offen offset:{1024*i}")
    a.e(kv[2:])
    a.e("s_barrier")
    srd(a, sX, 4, 2048 * 2048)
    srd(a, sOUT, 10, 2048 * 2048)
    a.e(act_lane(VV))
    a.e(["v_lshrrev_b32 v4, 2, v0", "v_xor_b32 v4, v4, v0", "v_bfe_u32 v4, v4, 2, 1", "v_add_u32 v4, -1, v4",
         f"v_and_b32 v{SEL}, 0x3f803f80, v4", f"v_mov_b32 v{SEL+1}, v{SEL}", f"v_mov_b32 v{SEL+2}, v{SEL}", f"v_mov_b32 v{SEL+3}, v{SEL}",
         "v_and_b32 v4, 31, v0", "v_lshlrev_b32 v4, 11, v4", "v_lshrrev_b32 v5, 5, v0", f"v_lshl_add_u32 v{VO}, v5, 4, v4",
         f"s_lshl_b32 s{sOut}, s{sMt}, 18", f"s_lshl_b32 s{sT0}, s{sWave}, 16", f"s_add_u32 s{sOut}, s{sOut}, s{sT0}",
         f"s_lshl_b32 s{sT0}, s{sNt}, 7", f"s_add_u32 s{sOut}, s{sOut}, s{sT0}",
         "v_lshlrev_b32 v4, 2, v0", f"v_add_u32 v4, {L_M}, v4", "v_mov_b32 v5, 0", "ds_write_b32 v4, v5"])
    for r in range(32): a.e(f"v_mov_b32 v{OO(0)+r}, 0")
    for r in range(8): a.e(f"v_mov_b32 v{LL(0)+r}, 0")
    for r in range(4): a.e([f"v_mov_b32 v{PB+4+r}, 0", f"v_mov_b32 v{VF(1)+4+r}, 0"])
    kvo = lambda T: ((T >> 3) & 1) * 32768 + (T & 7) * 2048
    def kread(T): return [f"ds_read_b128 {vr(KF(T&1)+4*s,4)}, v{VL} offset:{kvo(T)+1024*s}" for s in range(2)]
    def vread(T): return [f"ds_read_b128 {vr(VF(T&1)+4*s,4)}, v{VL} offset:{kvo(T)+16384+1024*s}" for s in range(2)]
    a.e(["s_waitcnt vmcnt(0) lgkmcnt(0)", "s_barrier"])
    a.e(kread(0) + kread(1) + vread(0))
    for i in range(4): a.e(f"buffer_load_dwordx4 {vr(XR+4*i,4)}, v{VO}, {sr(sX,4)}, s{sOut} offen offset:{32*i}")
    a.e(["s_waitcnt lgkmcnt(4)"])
    for x in range(2): a.e([mfma32(SS(x), KF(0), QF(x), "0"), mfma32(SS(x), KF(0) + 4, QF(x) + 4)])
    def rowmax(S):
        return [f"v_max3_f32 v4, v{S}, v{S+1}, v{S+2}"] + [f"v_max3_f32 v4, v4, v{S+3+2*i}, v{S+4+2*i}" for i in range(6)] + [f"v_max_f32 v4, v4, v{S+15}"]
    def negmax(x):
        return ["v_mov_b32 v5, v4", "s_nop 1", "v_permlane32_swap_b32 v4, v5", "v_max_f32 v4, v4, v5"] + [f"v_sub_f32 v{NM(x)+r}, 0, v4" for r in range(16)]
    a.e(["s_nop 7", "s_nop 1"])
    for x in range(2): a.e(rowmax(SS(x)) + negmax(x))
    for r in range(16): a.e(f"v_add_f32 v{SS(0)+r}, v{SS(0)+r}, v{NM(0)+r}")
    a.e(f"s_mov_b32 s{sCnt}, 4")
    ts(a, 1)
    a.e("s_waitcnt lgkmcnt(0)")
    a.raw(".p2align 6")
    a.lab("af_aloop")
    for u in range(32):
        t = u >> 1; x = u & 1; y = 1 - x
        S = SS(x)
        ex = [f"v_exp_f32 v{S+i}, v{S+i}" for i in range(16)]
        cv = [f"v_cvt_pk_bf16_f32 v{PB+i}, v{S+2*i}, v{S+2*i+1}" for i in range(8)]
        tp = t - 1 + x; tn = t + x
        M = {'5': mfma32(OO(y), VF(tp & 1) + 4, PB + 4), '6': mfma16(LL(y), SEL, PB + 4),
             '1': mfma32(SS(y), KF(tn & 1), QF(y), NM(y)), '2': mfma32(SS(y), KF(tn & 1) + 4, QF(y) + 4),
             '3': mfma32(OO(x), VF(t & 1), PB), '4': mfma16(LL(x), SEL, PB)}
        for c in SCHED:
            if 'a' in AFX and c not in 'W': continue
            if c in M: a.e(M[c])
            elif c == 'e': a.e(ex.pop(0))
            elif c == 'c': a.e(cv.pop(0))
            elif c == 'n': a.e("s_nop 0")
            elif c == 'W':
                if x:
                    a.e("s_waitcnt lgkmcnt(0)")
                    if (t & 7) == 6: a.e("s_barrier")
                elif u == 30: a.e([f"s_sub_u32 s{sCnt}, s{sCnt}, 1", f"s_cmp_lg_u32 s{sCnt}, 0"])
            elif c == 'R': a.e(kread(t + 2) if x else vread(t + 1))
        assert 'a' in AFX or (not ex and not cv)
    a.e("s_cbranch_scc1 af_aloop")
    a.e([mfma32(OO(1), VF(1) + 4, PB + 4), mfma16(LL(1), SEL, PB + 4), "s_waitcnt vmcnt(0)"])
    ts(a, 2)
    a.e([f"v_max3_f32 v4, |v{OO(0)}|, |v{OO(0)+1}|, |v{OO(0)+2}|"] + [f"v_max3_f32 v4, v4, |v{OO(0)+3+2*i}|, |v{OO(0)+4+2*i}|" for i in range(6)] +
        [f"v_mov_b32 v5, {hex(f2u(2.0**24))}", f"v_cmp_nlt_f32 vcc, v{LL(0)}, v5", f"v_mov_b32 v6, {hex(f2u(2.0**126))}", "s_nop 0"] +
        [f"v_max3_f32 v4, v4, |v{OO(0)+3+2*i}|, |v{OO(0)+4+2*i}|" for i in range(6, 14)] + [f"v_max_f32 v4, v4, |v{OO(0)+31}|",
         f"v_cmp_nlt_f32 s[60:61], v{LL(1)}, v5", "v_cmp_nlt_f32 s[62:63], v4, v6",
         "s_nop 1", "s_or_b64 vcc, vcc, s[60:61]", "s_or_b64 vcc, vcc, s[62:63]", "s_cmp_lg_u64 vcc, 0",
         "s_cbranch_scc1 af_redo"])
    def ostore(x, sb, add, sh):
        o = [f"v_rcp_f32 v4, v{LL(x)}", f"s_mul_i32 s{sT0}, s{sb}, {2*ACT_TB}"]
        for hf in range(2):
            o += [f"v_mul_f32 v{OO(x)+r}, v4, v{OO(x)+r}" for r in range(8 * hf, 8 * hf + 8)]
            o += [f"v_cvt_pk_bf16_f32 v{SS(x)+r}, v{OO(x)+2*r}, v{OO(x)+2*r+1}" for r in range(4 * hf, 4 * hf + 4)]
            if hf == 0:
                o += [f"s_lshl_b32 s{sT1}, s{sh}, 10", f"s_add_u32 s{sT0}, s{sT0}, s{sT1}", f"s_add_u32 s{sT0}, s{sT0}, {WS_ACT + 112*1024 + add*2*ACT_TB}"]
            o += [f"buffer_store_dwordx4 {vr(SS(x)+4*hf,4)}, v{VV}, {sr(sWS,4)}, s{sT0} offen offset:{512*hf} sc1"]
        return o
    for x in range(2): a.e(ostore(x, sTB, x, sHead))
    AC2 = lambda cb: 16 + 16 * cb
    AF2 = lambda s, cb: 48 + 8 * s + 4 * cb
    OB = lambda h, s: 64 + 8 * (h % NOB) + 4 * s
    VA = lambda cb: 8 + cb
    def prep():
        o = []
        for i in range(16): o += [f"v_lshlrev_b32 v{AC2(0)+2*i}, 16, v{XR+i}", f"v_and_b32 v{AC2(0)+2*i+1}, 0xffff0000, v{XR+i}"]
        o += wread_lane(10) + [f"v_add_u32 v{VA(0)}, 0x10000, v10", f"v_xor_b32 v{VA(1)}, 64, v{VA(0)}", f"v_mov_b32 v6, {L_M}",
              f"s_lshl_b32 s{sO}, s{sMt}, 2", f"s_add_u32 s{sO}, s{sO}, s{sWave}", f"s_mul_i32 s{sO}, s{sO}, {2*ACT_TB}", f"s_add_u32 s{sO}, s{sO}, {WS_ACT + 112*1024}"]
        return o
    a.lab("af_signal")
    a.e(prep())
    a.e(["v_mov_b32 v5, 1", "s_mov_b64 exec, 1",
         f"s_lshl_b32 s{sT0}, s{sQB}, 5", f"s_add_u32 s{sT0}, s{sT0}, s{sHead}", f"s_lshl_b32 s{sT0}, s{sT0}, 2", f"s_add_u32 s{sT0}, s{sT0}, {WS_FLAG}",
         "v_mov_b32 v4, 0",
         "s_waitcnt vmcnt(0) lgkmcnt(0)", f"ds_add_rtn_u32 v7, v6, v5 offset:{M_C1}",
         "s_waitcnt lgkmcnt(0)", f"v_readfirstlane_b32 s{sT1}, v7", "s_nop 0", f"s_cmp_lg_u32 s{sT1}, 3", "s_cbranch_scc1 af_nosig",
         f"buffer_store_dword v5, v4, {sr(sWS,4)}, s{sT0} offen sc1"])
    ts(a, 3)
    a.e(["s_mov_b64 exec, -1", "v_and_b32 v4, 31, v0", "v_lshlrev_b32 v4, 2, v4",
         f"s_lshr_b32 s{sT0}, s{sMt}, 1", f"s_lshl_b32 s{sT0}, s{sT0}, 7", f"s_add_u32 s{sT0}, s{sT0}, {WS_FLAG}", f"s_mov_b32 s{sCnt}, {os.environ.get('AF_TO', '3000')}"])
    a.lab("af_poll")
    a.e([f"buffer_load_dword v5, v4, {sr(sWS,4)}, s{sT0} offen sc1", "v_mov_b32 v7, 1", "s_waitcnt vmcnt(0)", "v_cmp_eq_u32 vcc, 0, v5", "s_nop 1",
         "s_cmp_eq_u64 vcc, 0", "s_cbranch_scc1 af_pok",
         "s_sleep 2", f"s_sub_u32 s{sCnt}, s{sCnt}, 1", f"s_cmp_lg_u32 s{sCnt}, 0", "s_cbranch_scc1 af_poll",
         "v_mov_b32 v7, 2", f"ds_write_b32 v6, v7 offset:{M_HW}"])
    a.lab("af_tmo")
    a.e([f"s_mov_b32 s{sMode}, 1", f"s_mov_b32 s{sH}, 0", f"s_mov_b32 s{sH1}, 32",
         f"s_lshl_b32 s{sB0}, s{sMt}, 2", f"s_add_u32 s{sB0}, s{sB0}, s{sWave}", f"s_add_u32 s{sB1}, s{sB0}, 1", "s_branch af_slow"])
    a.lab("af_nosig")
    ts(a, 3)
    a.e(["s_mov_b64 exec, -1", "s_setprio 0"])
    spin("af_hw", M_HW, 1)
    a.e([f"s_setprio {PRA}", f"s_cmp_eq_u32 s{sT1}, 2", "s_cbranch_scc1 af_tmo", "s_branch af_oph"])
    a.lab("af_pok")
    a.e(f"ds_write_b32 v6, v7 offset:{M_HW}")
    a.lab("af_oph")
    ts(a, 4)
    vm = VM()
    def oload(h):
        o = []
        if h and h % 4 == 0: o.append(f"s_add_u32 s{sO}, s{sO}, 4096")
        for s in range(2):
            o.append(f"buffer_load_dwordx4 {vr(OB(h,s),4)}, v{VV}, {sr(sWS,4)}, s{sO} offen offset:{(h%4)*1024 + 512*s} sc1"); vm.op(('o', h, s))
        return o
    base = [0x10000]
    def ar2(h, s, cb):
        o = []
        sl = wo_slot(h)
        if s == 0 and cb == 0 and not (0 <= sl - base[0] <= 0x10000 - 4096):
            base[0] = sl & ~0x7fff
            o += [f"v_add_u32 v{VA(0)}, {base[0]}, v10", f"v_xor_b32 v{VA(1)}, 64, v{VA(0)}"]
        return o + [f"ds_read_b64_tr_b16 {vr(AF2(s,cb)+2*hf,2)}, v{VA(cb)} offset:{sl - base[0] + 1024*s + 2048*hf}" for hf in range(2)]
    for h in range(NOB): a.e(oload(h))
    for s in range(2):
        for cb in range(2): a.e(ar2(0, s, cb))
    for h in range(32):
        if h + 1 == 15: spin("af_w1", M_CW1, 4)
        if h + 1 == 23: spin("af_w2", M_CW2, 4)
        fresh = h + 1 in (15, 23)
        for s in range(2):
            for cb in range(2):
                w = []
                if cb == 0: w.append(f"vmcnt({vm.cnt(('o', h, s))})")
                if not fresh: w.append(f"lgkmcnt({6 if h < 31 else 6 - 2 * (2 * s + cb)})")
                if w: a.e("s_waitcnt " + " ".join(w))
                a.e(mfma32(AC2(cb), AF2(s, cb), OB(h, s)))
                if h < 31: a.e(ar2(h + 1, s, cb))
        if h + NOB < 32: a.e(oload(h + NOB))
        if h == 29:
            a.e([f"s_xor_b32 s{sT0}, s{sWave}, 3", f"s_lshl_b32 s{sT0}, s{sT0}, 14", f"s_add_u32 s{sT0}, s{sT0}, {L_W}", f"v_add_u32 v11, s{sT0}, v{VL}"])
    RB = OB(8, 0)
    for q in range(4): a.e(f"ds_read_b128 {vr(RB+4*q,4)}, v11 offset:{1024*q}")
    for q in range(4):
        a.e(f"s_waitcnt lgkmcnt({3-q})")
        for r in range(4): a.e([f"v_lshlrev_b32 v{RB+16+8*q+2*r}, 16, v{RB+4*q+r}", f"v_and_b32 v{RB+17+8*q+2*r}, 0xffff0000, v{RB+4*q+r}"])
    for q in range(4):
        for r in range(8): a.e(f"v_add_f32 v{AC2(0)+8*q+r}, v{AC2(0)+8*q+r}, v{RB+16+8*q+r}")
        for r in range(4): a.e(f"v_cvt_pk_bf16_f32 v{RB+4*q+r}, v{AC2(0)+8*q+2*r}, v{AC2(0)+8*q+2*r+1}")
        a.e(f"buffer_store_dwordx4 {vr(RB+4*q,4)}, v{VO}, {sr(sOUT,4)}, s{sOut} offen offset:{32*q}")
    if PROF: a.e("s_waitcnt vmcnt(0)")
    ts(a, 5)
    ts_dump(a, 6, sWS, sWave, 1, sT0)
    a.e("s_endpgm")
    a.lab("af_redo")
    a.e([f"s_mov_b32 s{sMode}, 0", f"s_mov_b32 s{sH}, s{sHead}", f"s_add_u32 s{sH1}, s{sHead}, 1", f"s_mov_b32 s{sB0}, s{sTB}", f"s_add_u32 s{sB1}, s{sTB}, 2"])
    a.lab("af_slow")
    a.e([f"s_mov_b32 s{sB}, s{sB0}", "s_waitcnt vmcnt(0) lgkmcnt(0)"])
    a.lab("af_slow_b")
    S = SS(1)
    a.e([f"s_lshl_b32 s{sK}, s{sH}, 17", f"s_lshl_b32 s{sT0}, s{sB}, 11", f"s_add_u32 s{sT0}, s{sT0}, s{sK}",
         f"buffer_load_dwordx4 {vr(QF(0),4)}, v{VL}, {sr(sWS,4)}, s{sT0} offen",
         f"buffer_load_dwordx4 {vr(QF(0)+4,4)}, v{VL}, {sr(sWS,4)}, s{sT0} offen offset:1024",
         f"s_add_u32 s{sK}, s{sK}, {WS_K}", f"s_mov_b32 s{sT0}, s{sK}", f"s_mov_b32 s{sCnt}, 64", "v_mov_b32 v4, 0xff800000"])
    a.lab("af_slow_p1")
    a.e([f"buffer_load_dwordx4 {vr(KF(0),4)}, v{VL}, {sr(sWS,4)}, s{sT0} offen",
         f"buffer_load_dwordx4 {vr(KF(0)+4,4)}, v{VL}, {sr(sWS,4)}, s{sT0} offen offset:1024",
         "s_waitcnt vmcnt(0)",
         mfma32(S, KF(0), QF(0), "0"), mfma32(S, KF(0) + 4, QF(0) + 4), "s_nop 7", "s_nop 3"])
    a.e([f"v_max3_f32 v4, v4, v{S+2*i}, v{S+1+2*i}" for i in range(8)])
    a.e([f"s_add_u32 s{sT0}, s{sT0}, 2048", f"s_sub_u32 s{sCnt}, s{sCnt}, 1", f"s_cmp_lg_u32 s{sCnt}, 0", "s_cbranch_scc1 af_slow_p1"])
    a.e(negmax(0))
    for r in range(16): a.e(f"v_mov_b32 v{OO(0)+r}, 0")
    for r in range(4): a.e(f"v_mov_b32 v{LL(0)+r}, 0")
    a.e([f"s_mov_b32 s{sCnt}, 64"])
    a.lab("af_slow_p2")
    a.e([f"s_add_u32 s{sT0}, s{sK}, {WS_V - WS_K}",
         f"buffer_load_dwordx4 {vr(KF(0),4)}, v{VL}, {sr(sWS,4)}, s{sK} offen",
         f"buffer_load_dwordx4 {vr(KF(0)+4,4)}, v{VL}, {sr(sWS,4)}, s{sK} offen offset:1024",
         f"buffer_load_dwordx4 {vr(VF(0),4)}, v{VL}, {sr(sWS,4)}, s{sT0} offen",
         f"buffer_load_dwordx4 {vr(VF(0)+4,4)}, v{VL}, {sr(sWS,4)}, s{sT0} offen offset:1024",
         "s_waitcnt vmcnt(0)",
         mfma32(S, KF(0), QF(0), NM(0)), mfma32(S, KF(0) + 4, QF(0) + 4), "s_nop 7", "s_nop 3"])
    a.e([f"v_exp_f32 v{S+i}, v{S+i}" for i in range(16)] + ["s_nop 0"])
    a.e([f"v_cvt_pk_bf16_f32 v{PB+i}, v{S+2*i}, v{S+2*i+1}" for i in range(8)] + ["s_nop 1"])
    a.e([mfma32(OO(0), VF(0), PB), mfma32(OO(0), VF(0) + 4, PB + 4), mfma16(LL(0), SEL, PB), mfma16(LL(0), SEL, PB + 4),
         f"s_add_u32 s{sK}, s{sK}, 2048", f"s_sub_u32 s{sCnt}, s{sCnt}, 1", f"s_cmp_lg_u32 s{sCnt}, 0", "s_nop 7", "s_nop 3", "s_cbranch_scc1 af_slow_p2"])
    a.e(ostore(0, sB, 0, sH))
    a.e(["s_waitcnt vmcnt(0)",
         f"s_add_u32 s{sB}, s{sB}, 1", f"s_cmp_lt_u32 s{sB}, s{sB1}", "s_cbranch_scc1 af_slow_b",
         f"s_add_u32 s{sH}, s{sH}, 1", f"s_cmp_lt_u32 s{sH}, s{sH1}", "s_cbranch_scc1 af_slow",
         f"s_cmp_eq_u32 s{sMode}, 0", "s_cbranch_scc1 af_signal"])
    a.e(prep())
    a.e("s_branch af_oph")

    sA, sWo, sDw, sWq, sR2, sJ13 = range(51, 57)
    ACC = lambda cb, ti: 128 + 32 * ti + 16 * cb
    BF = lambda b, s, ti: 32 + 32 * b + 16 * s + 4 * ti
    AF = lambda s, cb: 16 + 8 * s + 4 * cb
    VB = lambda ti: 8 + ti
    VW = lambda i: 12 + i
    VG = lambda cb: 2 + cb
    NBODY = 28
    a.raw(".p2align 6")
    a.lab("af_gemm")
    a.e([f"s_setprio {PRG}",
         "v_lshrrev_b32 v4, 3, v0", "v_and_b32 v5, 7, v0", "v_and_b32 v6, 2, v4", "v_lshlrev_b32 v6, 1, v6", "v_xor_b32 v5, v5, v6",
         "v_lshlrev_b32 v4, 11, v4", f"v_lshl_add_u32 v{VW(0)}, v5, 4, v4"] +
        [f"v_add_u32 v{VW(i)}, {i*(16384-1024)}, v{VW(0)}" for i in range(1, 4)] +
        [f"s_lshl_b32 s{sWq}, s{sNt}, 7", f"s_lshl_b32 s{sT0}, s{sJ}, 16", f"s_add_u32 s{sWo}, s{sWq}, s{sT0}",
         f"s_add_u32 s{sWq}, s{sWo}, s{sT0}",
         f"s_lshl_b32 s{sDw}, s{sJ}, 14", f"s_xor_b32 s{sR2}, s{sDw}, 0x8000", f"s_add_u32 s{sDw}, s{sDw}, {L_W}", f"s_add_u32 s{sR2}, s{sR2}, {L_W}",
         f"s_add_u32 s{sK}, s{sK}, 16384",
         f"s_mul_i32 s{sA}, s{sMt}, {8*ACT_TB}", f"s_lshl_b32 s{sT0}, s{sJ}, 10", f"s_add_u32 s{sA}, s{sA}, s{sT0}", f"s_add_u32 s{sA}, s{sA}, {WS_ACT}"])
    a.e(act_lane(6))
    for ti in range(4):
        a.e([f"s_xor_b32 s{sT0}, s{sJ}, {ti}", f"s_mul_i32 s{sT0}, s{sT0}, {2*ACT_TB}", f"v_add_u32 v{VB(ti)}, s{sT0}, v6"])
    a.e(wread_lane(6))
    a.e([f"v_add_u32 v{VG(0)}, s{sDw}, v6", f"v_xor_b32 v{VG(1)}, 64, v{VG(0)}", "s_waitcnt lgkmcnt(0)"])
    ts(a, 0)
    srd(a, sWD, 8, 3584 * 2048)
    srd(a, sWS, 12, WS_BYTES)
    srd(a, sWO, 6, 1024 * 2048)
    vm = VM()
    def tag(items, t):
        return [(g, t) for g in items]
    def emit(it):
        a.e(it[0]); vm.op(it[1])
    def wdma(i):
        o = [[f"buffer_load_dwordx4 v{VW(k)}, {sr(sWD,4)}, s{sWo} offen offset:{1024*k} lds"] for k in range(4)]
        o[0] = [f"s_add_u32 m0, s{sDw}, {(i & 3) * 4096}", "s_nop 0"] + o[0]
        o[3] = o[3] + [f"s_add_u32 s{sWo}, s{sWo}, 262144"]
        return tag(o, ('w', i))
    def wodma(sbase, ldsoff, head, t):
        o = [[f"buffer_load_dwordx4 v{VW(k)}, {sr(sWO,4)}, s{sT1} offen offset:{1024*k} lds"] for k in range(4)]
        o[0] = [f"s_add_u32 m0, s{sbase}, {ldsoff}", f"s_add_u32 s{sT1}, s{sWq}, {head * 65536}"] + o[0]
        return tag(o, t)
    def bload(i, s):
        o = [[f"buffer_load_dwordx4 {vr(BF(i%3,s,ti),4)}, v{VB(ti)}, {sr(sWS,4)}, s{sA} offen offset:{512*s}"] for ti in range(4)]
        if s: o[3] = o[3] + [f"s_add_u32 s{sA}, s{sA}, 4096"]
        return tag(o, ('b', i, s))
    def aread(s, cb, i): return [f"ds_read_b64_tr_b16 {vr(AF(s,cb)+2*hf,2)}, v{VG(cb)} offset:{(i&3)*4096 + 1024*s + 2048*hf}" for hf in range(2)]
    kv1 = tag(kvdma(1), ('kv', 1))
    pro = [wdma(0), bload(0, 0), bload(0, 1), wdma(1), bload(1, 0), bload(1, 1), wdma(2), kv1[:4], bload(2, 0), bload(2, 1), wdma(3), kv1[4:]]
    a.e("s_barrier")
    for g in pro[:PRE]:
        for it in g: emit(it)
    a.e("s_barrier")
    ts(a, 1)
    for g in pro[PRE:]:
        for it in g: emit(it)
    a.e(f"s_waitcnt vmcnt({vm.cnt(('w', 0))})")
    for s in range(2):
        for cb in range(2): a.e(aread(s, cb, 0))
    extra = []
    early = [wodma(sDst, L_E, 0, 'e0'), 'e1']
    cw1 = [None]
    def barrier(p):
        assert not extra, "pending dma at barrier"
        a.e([f"s_waitcnt vmcnt({vm.cnt(('kv', p + 1))})", "s_barrier"])
        if p < 6:
            g = tag(kvdma(p + 2), ('kv', p + 2)); extra.extend([g[:4], g[4:]])
        else:
            for n in range(2): extra.append(wodma(sDst, (p & 1) * 32768 + 4096 * n, 7 + 8 * (p & 1) + n, ('kv', p + 2)))
        if p == 7: ts(a, 2)
    for i in range(NBODY):
        b = i % 3
        mm = lambda s, cb: [mfma32(ACC(cb, ti), AF(s, cb), BF(b, s, ti), "0" if (i == 0 and s == 0) else None) if 'g' not in AFX else [] for ti in range(4)]
        more = i + 1 < NBODY
        rd = lambda s, cb: a.e(aread(s, cb, i + 1)) if more else None
        def group(ms, its):
            for ti, m in enumerate(ms):
                a.e(m)
                if its: emit(its[ti])
        def xtra():
            if extra: return extra.pop(0)
            if early and 2 * i > BH[0]:
                g = early.pop(0)
                if g != 'e1': return g
                a.e([f"s_cmp_eq_u32 s{sJ}, 3", "s_cbranch_scc1 af_ge1"])
                for it in wodma(sDst, L_E + 4096, 1, 'e1'): a.e(it[0])
                a.lab("af_ge1")
            return None
        if 2 * i in BH: barrier(BH.index(2 * i))
        a.e(f"s_waitcnt vmcnt({vm.cnt(('b', i, 0), *([('w', i + 1)] if more else []))}) lgkmcnt(6)")
        if cw1[0] is None and ('kv', 9) in vm.last and not extra and vm.last[('kv', 9)] <= max(vm.last[('b', i, 0)], vm.last[('w', min(i + 1, NBODY - 1))]):
            cw1[0] = i
            a.e([f"v_mov_b32 v6, {L_M}", "v_mov_b32 v7, 1", "s_mov_b64 exec, 1", f"ds_add_u32 v6, v7 offset:{M_CW1}", "s_mov_b64 exec, -1", "s_waitcnt lgkmcnt(0)"])
        group(mm(0, 0), xtra()); rd(0, 0)
        a.e(f"s_waitcnt lgkmcnt({6 if more else 4})")
        group(mm(0, 1), bload(i + 3, 0) if i + 3 < NBODY else xtra()); rd(0, 1)
        if 2 * i + 1 in BH: barrier(BH.index(2 * i + 1))
        a.e(f"s_waitcnt vmcnt({vm.cnt(('b', i, 1))}) lgkmcnt({4 if more else 0})")
        group(mm(1, 0), wdma(i + 4) if i + 4 < NBODY else xtra()); rd(1, 0)
        group(mm(1, 1), bload(i + 3, 1) if i + 3 < NBODY else xtra()); rd(1, 1)
    for p in range(8):
        if BH[p] >= 2 * NBODY:
            barrier(p)
            while extra:
                for it in extra.pop(0): emit(it)
    assert not extra and not early
    ts(a, 3)
    a.e([f"v_mov_b32 v6, {L_M}", "v_mov_b32 v7, 1", f"v_add_u32 v4, s{sDw}, v{VL}", f"v_add_u32 v5, s{sR2}, v{VL}",
         f"s_lshl_b32 s{sT0}, s{sJ}, 2", f"v_add_u32 v8, s{sT0}, v6", f"v_xor_b32 v9, 8, v8", f"v_xor_b32 v10, 4, v8",
         f"s_xor_b32 s{sJ13}, s{sR2}, 0x4000", f"v_add_u32 v11, s{sJ13}, v{VL}"])
    if cw1[0] is None:
        a.e(["s_mov_b64 exec, 1", "s_waitcnt vmcnt(0)", f"ds_add_u32 v6, v7 offset:{M_CW1}", "s_mov_b64 exec, -1"])
    else: a.e("s_nop 1")
    for q in range(16): a.e(f"ds_write_b128 v4, {vr(ACC(0,2)+4*q,4)} offset:{1024*q}")
    a.e(["s_waitcnt lgkmcnt(0)", f"ds_write_b32 v8, v7 offset:{M_F1}"])
    spin("af_r1", M_F1, 1, vaddr=9)
    for q in list(range(8, 16)) + list(range(8)): a.e(f"ds_read_b128 {vr(ACC(0,2)+4*q,4)}, v5 offset:{1024*q}")
    for q in range(8):
        a.e(f"s_waitcnt lgkmcnt({15-q})")
        for r in range(4): a.e(f"v_add_f32 v{ACC(0,1)+4*q+r}, v{ACC(0,1)+4*q+r}, v{ACC(0,3)+4*q+r}")
    a.e("s_waitcnt lgkmcnt(0)")
    for q in range(8): a.e(f"ds_write_b128 v5, {vr(ACC(0,1)+4*q,4)} offset:{1024*q}")
    for n in range(2):
        for it in wodma(sR2, 8192 + 4096 * n, 23 + n, 'l'): a.e(it[0])
    a.e(["v_mov_b32 v7, 1", "s_waitcnt lgkmcnt(0)", f"ds_write_b32 v8, v7 offset:{M_F2}"])
    for r in range(32): a.e(f"v_add_f32 v{ACC(0,0)+r}, v{ACC(0,0)+r}, v{ACC(0,2)+r}")
    spin("af_r2", M_F2, 1, vaddr=10)
    for q in range(8): a.e(f"ds_read_b128 {vr(ACC(0,1)+4*q,4)}, v11 offset:{1024*q}")
    for q in range(8):
        a.e(f"s_waitcnt lgkmcnt({7-q})")
        if q == 7:
            a.e([f"s_cmp_lg_u32 s{sJ}, 3", "s_cbranch_scc1 af_gl9"])
            for it in wodma(sJ13, 4096, 25, 'l'): a.e(it[0])
            a.lab("af_gl9")
        for r in range(4): a.e(f"v_add_f32 v{ACC(0,0)+4*q+r}, v{ACC(0,0)+4*q+r}, v{ACC(0,1)+4*q+r}")
        for r in range(2): a.e(f"v_cvt_pk_bf16_f32 v{16+2*q+r}, v{ACC(0,0)+4*q+2*r}, v{ACC(0,0)+4*q+2*r+1}")
    for q in range(4): a.e(f"ds_write_b128 v11, {vr(16+4*q,4)} offset:{1024*q}")
    ts(a, 4)
    a.e(["v_mov_b32 v7, 1", "s_mov_b64 exec, 1", "s_waitcnt vmcnt(0) lgkmcnt(0)", f"ds_add_u32 v6, v7 offset:{M_CW2}", "s_mov_b64 exec, -1", "s_waitcnt lgkmcnt(0)"])
    ts(a, 5)
    ts_dump(a, 6, sWS, sWave, 1, sT0)
    a.e("s_endpgm")
    a.lab("af_exit")
    a.e("s_endpgm")
    return kernel_desc(name, 256), f"; @launch kernel={name} grid=(256,1,1) block=(512,1,1) lds={AF_LDS}"
```

```python
from common import *
import os
G1X = os.environ.get('G1X', '')
ST = os.environ.get('ST', ' sc1')

G1_WST = 20480
G1_XR = 4 * G1_WST
G1_XST = 16384
G1_PF = G1_XR + 4 * G1_XST
G1_LDS = G1_PF
PF = os.environ.get('G1PF', '1') == '1'
PF0 = int(os.environ.get('G1PF0', '128'))
PFN = int(os.environ.get('G1PFN', '0'))

def gen_g1(a):
    name = "g1_kernel"
    ACC = lambda b, tb: 96 + (b * 4 + tb) * 4
    AF = lambda b: 16 + 4 * b
    BF = lambda p, tb: 56 + 16 * p + 4 * tb
    VA = 1; VB = 11; VD = 88
    sWQ, sWG, sWU, sGU, sWS = 20, 24, 28, 32, 36
    sWave, sMw, sNw, sMt, sNt, sP, sIsA, sF0 = 40, 41, 42, 43, 44, 45, 46, 47
    sQ, sG, sT0, sT1, sT2, sCnt, sDst, sXs, sPf, sPd = 48, 49, 50, 51, 52, 53, 54, 55, 56, 57
    kernel_head(a, name)
    a.e(["s_cmp_ge_u32 s2, 256", "s_cbranch_scc1 g1_exit",
         "s_load_dwordx2 s[6:7], s[0:1], 8", "s_load_dwordx4 s[8:11], s[0:1], 32", "s_load_dwordx2 s[12:13], s[0:1], 72",
         "s_load_dwordx2 s[14:15], s[0:1], 16", "s_load_dwordx2 s[16:17], s[0:1], 48",
         "v_lshrrev_b32 v12, 6, v0", "v_and_b32 v0, 63, v0",
         f"v_readfirstlane_b32 s{sWave}, v12",
         f"s_and_b32 s{sT0}, s2, 7", f"s_lshr_b32 s{sT1}, s2, 3",
         f"s_lshl_b32 s{sNt}, s{sT0}, 2", f"s_and_b32 s{sT0}, s{sT1}, 3", f"s_add_u32 s{sNt}, s{sNt}, s{sT0}",
         f"s_lshr_b32 s{sMt}, s{sT1}, 2",
         f"s_lshr_b32 s{sP}, s{sNt}, 1",
         f"s_xor_b32 s{sIsA}, s{sNt}, s{sP}", f"s_and_b32 s{sIsA}, s{sIsA}, 1",
         f"s_mul_i32 s{sF0}, s{sP}, 224",
         f"s_lshl_b32 s{sT0}, s{sIsA}, 5", f"s_add_u32 s{sT0}, s{sT0}, 96",
         f"s_bitcmp1_b32 s{sNt}, 0", f"s_cselect_b32 s{sT0}, s{sT0}, 0", f"s_add_u32 s{sF0}, s{sF0}, s{sT0}",
         f"s_and_b32 s{sMw}, s{sWave}, 3", f"s_lshr_b32 s{sNw}, s{sWave}, 2",
         f"s_lshl_b32 s{sT0}, s{sIsA}, 1", f"s_add_u32 s{sT0}, s{sT0}, s{sNw}"])
    for v in range(1, 4):
        a.e([f"s_cmp_eq_u32 s{sT0}, {v}", f"s_cbranch_scc1 g1_v{v}"])

    def variant(isA, nw):
        V = isA * 2 + nw
        if isA: S0, SG, RO_G, RO_U = 256, 192, 8192, 14336
        else: S0, SG, RO_G, RO_U = 128, 256, 4096, 12288
        if isA: qk = list(range(6)) if nw == 0 else [6, 7]; quads = [0] if nw == 0 else [1, 2]
        else: qk = [2 * nw, 2 * nw + 1]; quads = [2 * nw, 2 * nw + 1]
        blocks = [('q', i) for i in qk]
        for q in quads: blocks += [('g', 2 * q), ('g', 2 * q + 1), ('u', 2 * q), ('u', 2 * q + 1)]
        stride = [S0 if k == 'q' else SG for k, _ in blocks]
        a.lab(f"g1_v{V}")
        def slot_decode(dst, S, base_s, gstride, kind):
            o = [f"v_add_u32 v12, {base_s}, v0"]
            if S == 192:
                o += ["v_mul_u32_u24 v13, 43691, v12", "v_lshrrev_b32 v13, 19, v13", "v_mul_u32_u24 v14, 12, v13", "v_sub_u32 v14, v12, v14",
                      "v_bfe_u32 v15, v13, 3, 1", "v_lshlrev_b32 v15, 1, v15", "v_xor_b32 v14, v14, v15"]
            elif S == 256:
                o += ["v_lshrrev_b32 v13, 4, v12", "v_and_b32 v14, 15, v12", "v_and_b32 v15, 3, v13", "v_lshlrev_b32 v15, 1, v15", "v_xor_b32 v14, v14, v15",
                      "v_and_b32 v15, 8, v13", "v_xor_b32 v14, v14, v15"]
            else:
                o += ["v_lshrrev_b32 v13, 3, v12", "v_and_b32 v14, 7, v12", "v_and_b32 v15, 2, v13", "v_xor_b32 v14, v14, v15",
                      "v_bfe_u32 v15, v13, 3, 1", "v_lshlrev_b32 v15, 2, v15", "v_xor_b32 v14, v14, v15"]
            o += [f"v_mul_u32_u24 v13, {gstride}, v13"]
            if kind == 'qk':
                o += ["v_lshrrev_b32 v15, 3, v14", "v_lshl_add_u32 v13, v15, 11, v13", "v_and_b32 v14, 7, v14"]
            o += [f"v_lshl_add_u32 v{dst}, v14, 4, v13"]
            return o
        if nw == 0:
            a.e([f"s_lshl_b32 s{sT0}, s{sMw}, 6", f"s_lshl_b32 s{sDst}, s{sMw}, 10"])
            if isA: plan = [('q', 0), ('q', 256), ('g', 0), ('gu', None), ('u', 128)]
            else: plan = [('q', 0), ('g', 0), ('g', 256), ('u', 0), ('u', 256)]
            for i, (k, sb) in enumerate(plan):
                if k == 'gu':
                    a.e([f"s_cmp_lt_u32 s{sMw}, 2", f"s_cselect_b32 s{sT1}, 384, 0", f"s_add_u32 s{sT1}, s{sT1}, s{sT0}", f"s_sub_u32 s{sT1}, s{sT1}, 128"])
                    a.e(slot_decode(VD + i, SG, f"s{sT1}", 7168, 'g'))
                else:
                    a.e([f"s_add_u32 s{sT1}, s{sT0}, {sb}"])
                    if k == 'q': a.e(slot_decode(VD + i, S0, f"s{sT1}", 6144, 'qk' if isA else 'v'))
                    else: a.e(slot_decode(VD + i, SG, f"s{sT1}", 7168, 'g'))
            srds = [{'q': sWQ, 'g': sWG, 'u': sWU, 'gu': sGU}[k] for k, _ in plan]
            soffs = [sQ if k == 'q' else sG for k, _ in plan]
            a.e([f"s_lshl_b32 s{sQ}, s{sP}, 7"] + ([] if isA else [f"s_add_u32 s{sQ}, s{sQ}, 4096"]) + [f"s_lshl_b32 s{sG}, s{sF0}, 1"])
            a.e("s_waitcnt lgkmcnt(0)")
            ts(a, 0)
            srd(a, sWQ, 6, 1024 * 6144)
            srd(a, sWG, 8, 1024 * 7168)
            srd(a, sWU, 10, 1024 * 7168)
            if isA:
                a.e([f"s_cmp_lt_u32 s{sMw}, 2", f"s_cselect_b32 s{sGU}, s{sWG}, s{sWU}", f"s_cselect_b32 s{sGU+1}, s{sWG+1}, s{sWU+1}",
                     f"s_mov_b32 s{sGU+2}, {1024*7168}", f"s_mov_b32 s{sGU+3}, 0x00020000"])
            def dma(sl):
                o = [[f"s_add_u32 m0, s{sDst}, {sl*G1_WST + 4096*i}", "s_nop 0", f"buffer_load_dwordx4 v{VD+i}, {sr(srds[i],4)}, s{soffs[i]} offen lds"] for i in range(5)]
                o[-1] = o[-1] + [f"s_add_u32 s{sQ}, s{sQ}, {32*6144}", f"s_add_u32 s{sG}, s{sG}, {32*7168}"]
                return o
            ND = 5
            for st in range(4): a.e(dma(st))
            srd(a, sWS, 12, WS_BYTES)
        else:
            a.e([f"v_lshlrev_b32 v{VD}, 4, v0"] + [f"v_add_u32 v{VD+i}, {i*(32768-1024)}, v{VD}" for i in range(1, 4)])
            a.e([f"s_lshl_b32 s{sXs}, s{sMt}, 19", f"s_lshl_b32 s{sT0}, s{sMw}, 17", f"s_add_u32 s{sXs}, s{sXs}, s{sT0}", f"s_add_u32 s{sXs}, s{sXs}, {WS_XN}",
                 f"s_lshl_b32 s{sDst}, s{sMw}, 12", f"s_add_u32 s{sDst}, s{sDst}, {G1_XR}", "s_waitcnt lgkmcnt(0)"])
            ts(a, 0)
            srd(a, sWS, 12, WS_BYTES)
            def dma(sl):
                o = [[f"buffer_load_dwordx4 v{VD+i}, {sr(sWS,4)}, s{sXs} offen offset:{1024*i} lds"] for i in range(4)]
                o[0] = [f"s_add_u32 m0, s{sDst}, {sl*G1_XST}", "s_nop 0"] + o[0]
                o[-1] = o[-1] + [f"s_add_u32 s{sXs}, s{sXs}, 1024"]
                return o
            ND = 4
            for st in range(4): a.e(dma(st))
            if PF:
                r0 = PF0
                parts = [(6, 1024 * 6144, 62, r0 * 6144), (8, 1024 * 7168, 72, r0 * 7168), (10, 1024 * 7168, 72, r0 * 7168), (16, 3584 * 2048, 39, 0), (14, 1024 * 2048, 11, 0)]
                srd(a, sWU, 6, 1024 * 6144)
                a.e([f"s_mov_b32 s{sQ}, {parts[0][3]}", f"s_mov_b32 s{sG}, {parts[0][2] * 8192}"])
                lo = parts[0][2]
                for ptr, sz, n, off in parts[1:]:
                    srd(a, sWG, ptr, sz)
                    a.e([f"s_cmp_ge_u32 s2, {lo}", f"s_cselect_b32 s{sWU}, s{sWG}, s{sWU}", f"s_cselect_b32 s{sWU+1}, s{sWG+1}, s{sWU+1}", f"s_cselect_b32 s{sWU+2}, s{sWG+2}, s{sWU+2}",
                         f"s_cselect_b32 s{sQ}, {(off - lo * 8192) & 0xffffffff}, s{sQ}", f"s_cselect_b32 s{sG}, {n * 8192}, s{sG}"])
                    lo += n
                assert lo == 256
                a.e([f"s_lshl_b32 s{sT0}, s2, 2", f"s_add_u32 s{sT0}, s{sT0}, s{sMw}", f"s_lshl_b32 s{sT0}, s{sT0}, 11", f"s_add_u32 s{sQ}, s{sQ}, s{sT0}",
                     f"v_lshlrev_b32 v{VD+4}, 5, v0"])
                pf = [f"buffer_load_dword v12, v{VD+4}, {sr(sWU,4)}, s{sQ} offen", f"s_add_u32 s{sQ}, s{sQ}, s{sG}"]
        a.e(["v_bfe_u32 v12, v0, 2, 2", "v_lshrrev_b32 v13, 4, v0", "v_lshl_add_u32 v14, v13, 3, v12", "v_and_b32 v15, 3, v0", "v_lshlrev_b32 v15, 3, v15",
             "v_and_b32 v13, 1, v13"])
        for S in sorted(set(stride)):
            if S == 256: a.e(["v_lshl_add_u32 v93, v13, 2, v12"])
            elif S == 192: a.e(["v_mov_b32 v93, v13"])
            else: a.e(["v_lshrrev_b32 v93, 1, v12", "v_lshl_add_u32 v93, v13, 1, v93"])
            a.e(["v_lshlrev_b32 v93, 5, v93", f"v_mul_u32_u24 v94, {S}, v14", "v_add_u32 v94, v94, v15"])
            for b, (k, idx) in enumerate(blocks):
                if stride[b] != S: continue
                ro = {'q': 0, 'g': RO_G, 'u': RO_U}[k]
                a.e([f"v_xor_b32 v95, {32*idx}, v93", f"v_add_u32 v95, {ro}, v95", f"v_add_u32 v{VA+b}, v94, v95"])
        a.e([f"s_lshl_b32 s{sT0}, s{sMw}, 12", f"s_add_u32 s{sT0}, s{sT0}, {G1_XR}", f"v_lshlrev_b32 v{VB}, 4, v0", f"v_add_u32 v{VB}, s{sT0}, v{VB}"])
        def aread(b, sl):
            return [f"ds_read_b64_tr_b16 {vr(AF(b)+2*h,2)}, v{VA+b} offset:{sl*G1_WST + 4*h*stride[b]}" for h in range(2)]
        def bread(p, sl):
            return [f"ds_read_b128 {vr(BF(p,tb),4)}, v{VB} offset:{sl*G1_XST + 1024*tb}" for tb in range(4)]
        def mm(b, tb, p, c=None):
            if blocks[b][0] == 'q' and not isA: return mfma16(ACC(b, tb), BF(p, tb), AF(b), c)
            return mfma16(ACC(b, tb), AF(b), BF(p, tb), c)
        if PF and nw == 1:
            for i in range(PFN): a.e(pf)
        a.e([f"s_waitcnt vmcnt({3*ND + (PFN if PF and nw == 1 else 0)})", "s_barrier"])
        ts(a, 1)
        a.e(bread(0, 0))
        for b in range(10): a.e(aread(b, 0))
        def stage(sl, first=False, dmas=True, reads=True, vm=2, ex=3):
            usepf = PF and nw == 1
            p = sl & 1; nx = (sl + 1) & 3
            c = "0" if first else None
            a.e("s_waitcnt lgkmcnt(15)")
            a.e([mm(0, tb, p, c) for tb in range(4)])
            if reads:
                a.e(["s_waitcnt lgkmcnt(0)" if vm is None else f"s_waitcnt vmcnt({vm*ND + (ex if usepf else 0)}) lgkmcnt(0)"] + ([] if 'b' in G1X else ["s_barrier"]))
            else: a.e("s_waitcnt lgkmcnt(0)")
            dm = dma(sl) if dmas and 'm' not in G1X else []
            if dm and usepf: dm = dm + [pf]
            br = bread(1 - p, nx) if reads and 'r' not in G1X else []
            for b in range(1, 10):
                ar = aread(b - 1, nx) if reads and 'r' not in G1X else [[], []]
                f = [[ar[0]], [ar[1]], [], []]
                if b <= 2 and br: f[2] = [br[2*(b-1)]]; f[3] = [br[2*(b-1)+1]]
                if 3 <= b < 3 + len(dm): f[2] = dm[b - 3]
                for tb in range(4):
                    a.e(f[tb]); a.e(mm(b, tb, p, c))
            if reads and 'r' not in G1X: a.e(aread(9, nx))
        for sl in range(4): stage(sl, first=(sl == 0), ex=(PFN + sl if sl < 3 else 3))
        a.e(f"s_mov_b32 s{sCnt}, 6")
        a.raw(".p2align 6")
        a.lab(f"g1_loop{V}")
        for sl in range(4): stage(sl)
        a.e([f"s_sub_u32 s{sCnt}, s{sCnt}, 1", f"s_cmp_lg_u32 s{sCnt}, 0", f"s_cbranch_scc1 g1_loop{V}"])
        stage(0, dmas=False, vm=2); stage(1, dmas=False, vm=1, ex=2); stage(2, dmas=False, vm=0, ex=0); stage(3, dmas=False, reads=False)
        ts(a, 2)
        a.e(["v_lshlrev_b32 v1, 4, v0",
             "v_lshrrev_b32 v12, 4, v0", "v_lshlrev_b32 v12, 9, v12", "v_and_b32 v13, 15, v0", "v_lshl_add_u32 v2, v13, 4, v12",
             "v_bfe_u32 v13, v0, 3, 1", "v_lshl_add_u32 v12, v13, 8, v12", "v_and_b32 v13, 7, v0", "v_lshl_add_u32 v3, v13, 4, v12",
             f"s_mov_b32 s{sT2}, {hex(f2u(-LOG2E))}", f"s_mov_b32 s{sCnt}, {hex(f2u(LOG2E * 32 ** -0.5))}",
             f"s_lshl_b32 s{sT0}, s{sMt}, 3", f"s_lshl_b32 s{sT1}, s{sMw}, 1", f"s_add_u32 s{sT0}, s{sT0}, s{sT1}",
             f"s_lshl_b32 s{sQ}, s{sT0}, 11", f"s_lshl_b32 s{sT1}, s{sP}, 18", f"s_add_u32 s{sQ}, s{sQ}, s{sT1}",
             f"s_mul_i32 s{sG}, s{sT0}, {2*ACT_TB}", f"s_lshl_b32 s{sT1}, s{sF0}, 5", f"s_add_u32 s{sG}, s{sG}, s{sT1}",
             f"s_add_u32 s{sG}, s{sG}, {WS_ACT}"])
        if V == 0:
            a.e([f"s_or_b32 s{sT0}, s2, s{sWave}", f"s_cbranch_scc1 g1_noz"] + [f"v_mov_b32 v{4+i}, 0" for i in range(4)] +
                [f"s_mov_b32 s{sT0}, {WS_FLAG}", f"buffer_store_dwordx4 v[4:7], v1, {sr(sWS,4)}, s{sT0} offen"])
            a.lab("g1_noz")
        tmp = [16 + 4 * i for i in range(18)]
        ti = [0]
        def T():
            t = tmp[ti[0] % len(tmp)]; ti[0] += 1; return t
        for hp in range(len(qk) // 2):
            b0 = 2 * hp; idx = qk[b0] >> 1
            if isA:
                isq = idx < 2
                a.e(f"s_add_u32 s{sT0}, s{sQ}, {(WS_Q if isq else WS_K) + (idx & 1) * 131072}")
                for tb in range(4):
                    t = T()
                    for u in range(2):
                        D = ACC(b0 + u, tb)
                        if isq: a.e([f"v_mul_f32 v{D+j}, s{sCnt}, v{D+j}" for j in range(4)])
                        a.e([f"v_cvt_pk_bf16_f32 v{t+2*u+j}, v{D+2*j}, v{D+2*j+1}" for j in range(2)])
                    off = (tb >> 1) * 2048 + (tb & 1) * (256 if isq else 128)
                    a.e(f"buffer_store_dwordx4 {vr(t,4)}, v{2 if isq else 3}, {sr(sWS,4)}, s{sT0} offen offset:{off}{ST}")
            else:
                a.e(f"s_add_u32 s{sT0}, s{sQ}, {WS_V + (idx & 1) * 131072}")
                for db in range(2):
                    for i in range(2):
                        t = T()
                        for u in range(2):
                            D = ACC(b0 + db, 2 * i + u)
                            a.e([f"v_cvt_pk_bf16_f32 v{t+2*u+j}, v{D+2*j}, v{D+2*j+1}" for j in range(2)])
                        a.e(f"buffer_store_dwordx4 {vr(t,4)}, v3, {sr(sWS,4)}, s{sT0} offen offset:{i*2048 + db*128}{ST}")
        for qi, q in enumerate(quads):
            b0 = len(qk) + 4 * qi
            for tb in range(4):
                t = T()
                G = [ACC(b0 + u, tb) + j for u in range(2) for j in range(4)]
                U = [ACC(b0 + 2 + u, tb) + j for u in range(2) for j in range(4)]
                a.e([f"v_mul_f32 v{g}, s{sT2}, v{g}" for g in G])
                a.e([f"v_exp_f32 v{g}, v{g}" for g in G])
                a.e([f"v_add_f32 v{g}, 1.0, v{g}" for g in G])
                a.e([f"v_rcp_f32 v{g}, v{g}" for g in G])
                a.e([f"v_mul_f32 v{g}, v{g}, v{u}" for g, u in zip(G, U)])
                a.e([f"v_cvt_pk_bf16_f32 v{t+j}, v{G[2*j]}, v{G[2*j+1]}" for j in range(4)])
                a.e(f"s_add_u32 s{sT0}, s{sG}, {tb*ACT_TB + q*1024}")
                a.e(f"buffer_store_dwordx4 {vr(t,4)}, v1, {sr(sWS,4)}, s{sT0} offen{ST}")
        ts(a, 3)
        if PROF: a.e("s_waitcnt vmcnt(0)")
        ts(a, 4)
        ts_dump(a, 5, sWS, sWave, 0, sT0)
        a.e("s_endpgm")

    for isA in (0, 1):
        for nw in (0, 1): variant(isA, nw)
    a.lab("g1_exit")
    a.e("s_endpgm")
    return kernel_desc(name, 256), f"; @launch kernel={name} grid=(256,1,1) block=(512,1,1) lds={G1_LDS}"
```

```python
from common import *
import os
LST = os.environ.get('LNST', '')
LPF = os.environ.get('LNPF', '128')

def gen_ln(a):
    name = "ln_kernel"
    sX, sWS = 16, 20
    sWave, sT0, sT1 = 24, 25, 26
    kernel_head(a, name)
    a.e(["s_cmp_ge_u32 s2, 256", "s_cbranch_scc1 ln_exit",
         "s_load_dwordx2 s[4:5], s[0:1], 0", "s_load_dwordx2 s[12:13], s[0:1], 72",
         "s_load_dwordx4 s[28:31], s[0:1], 8", "s_load_dwordx4 s[32:35], s[0:1], 32", "s_load_dwordx2 s[36:37], s[0:1], 48",
         "v_lshrrev_b32 v1, 6, v0", "v_and_b32 v0, 63, v0",
         f"v_readfirstlane_b32 s{sWave}, v1",
         "v_and_b32 v2, 7, v0", "v_lshrrev_b32 v3, 3, v0",
         "v_lshlrev_b32 v4, 11, v2", "v_lshl_add_u32 v4, v3, 4, v4",
         "v_lshlrev_b32 v5, 4, v2", "v_lshl_add_u32 v5, v3, 8, v5",
         f"s_lshl_b32 s{sT0}, s2, 14", f"s_lshl_b32 s{sT1}, s{sWave}, 7", f"s_add_u32 s{sT0}, s{sT0}, s{sT1}",
         "s_waitcnt lgkmcnt(0)"])
    ts(a, 0)
    srd(a, sX, 4, 2048 * 2048)
    a.e([f"buffer_load_dwordx4 v[8:11], v4, {sr(sX,4)}, s{sT0} offen",
         f"buffer_load_dwordx4 v[12:15], v4, {sr(sX,4)}, s{sT0} offen offset:1024"])
    if LPF:
        R = int(LPF)
        srd(a, 40, 28, R * 6144); srd(a, 44, 32, R * 7168); srd(a, 48, 34, R * 7168)
        n0 = (R * 6144 + 8191) // 8192; n1 = (R * 7168 + 8191) // 8192
        a.e([f"v_lshlrev_b32 v60, 7, v0", f"s_lshl_b32 s60, s{sWave}, 8", f"s_add_u32 s60, s60, s2",
             f"s_cmp_ge_u32 s60, {n0}", "s_cselect_b32 s40, s44, s40", "s_cselect_b32 s41, s45, s41", "s_cselect_b32 s42, s46, s42", f"s_cselect_b32 s61, {n0}, 0",
             f"s_cmp_ge_u32 s60, {n0+n1}", "s_cselect_b32 s40, s48, s40", "s_cselect_b32 s41, s49, s41", f"s_cselect_b32 s61, {n0+n1}, s61",
             "s_sub_u32 s60, s60, s61", "s_lshl_b32 s60, s60, 13", "buffer_load_dword v61, v60, s[40:43], s60 offen"])
        NPF = 1
    else: NPF = 0
    srd(a, sWS, 12, WS_BYTES)
    a.e([f"s_lshr_b32 s{sT0}, s2, 1", f"s_lshl_b32 s{sT0}, s{sT0}, 15", f"s_and_b32 s{sT1}, s2, 1", f"s_lshl_b32 s{sT1}, s{sT1}, 7",
         f"s_add_u32 s{sT0}, s{sT0}, s{sT1}", f"s_lshl_b32 s{sT1}, s{sWave}, 11", f"s_add_u32 s{sT0}, s{sT0}, s{sT1}",
         f"s_add_u32 s{sT0}, s{sT0}, {WS_XN}", f"s_add_u32 s{sT1}, s{sT0}, 16384",
         "v_lshlrev_b32 v6, 6, v2", f"s_lshl_b32 s{sWave}, s{sWave}, 3", f"v_add_u32 v7, s{sWave}, v6",
         "v_mov_b32 v32, 0", "v_mov_b32 v33, 0", "v_mov_b32 v34, 0", "v_mov_b32 v35, 0"])
    ts(a, 1)
    for hlf in range(2):
        a.e(f"s_waitcnt vmcnt({1-hlf+NPF})")
        for i in range(4 * hlf, 4 * hlf + 4):
            a.e([f"v_lshlrev_b32 v{16+2*i}, 16, v{8+i}", f"v_and_b32 v{17+2*i}, 0xffff0000, v{8+i}",
                 f"v_add_f32 v32, v32, v{16+2*i}", f"v_add_f32 v34, v34, v{17+2*i}",
                 f"v_fmac_f32 v33, v{16+2*i}, v{16+2*i}", f"v_fmac_f32 v35, v{17+2*i}, v{17+2*i}"])
    a.e(["v_add_f32 v32, v32, v34", "v_add_f32 v33, v33, v35", "s_nop 1",
         "v_add_f32_dpp v32, v32, v32 row_ror:8 row_mask:0xf bank_mask:0xf", "v_add_f32_dpp v33, v33, v33 row_ror:8 row_mask:0xf bank_mask:0xf",
         "v_mov_b32 v34, v32", "v_mov_b32 v35, v33", "s_nop 1",
         "v_permlane16_swap_b32 v32, v34", "v_permlane16_swap_b32 v33, v35",
         "v_add_f32 v32, v32, v34", "v_add_f32 v33, v33, v35",
         "v_mov_b32 v34, v32", "v_mov_b32 v35, v33", "s_nop 1",
         "v_permlane32_swap_b32 v32, v34", "v_permlane32_swap_b32 v33, v35",
         "v_add_f32 v32, v32, v34", "v_add_f32 v33, v33, v35",
         "ds_write_b64 v7, v[32:33]", "s_waitcnt lgkmcnt(0)", "s_barrier"])
    for i in range(4): a.e(f"ds_read_b128 v[{36+4*i}:{39+4*i}], v6 offset:{16*i}")
    a.e("s_waitcnt lgkmcnt(0)")
    for i in range(4): a.e([f"v_add_f32 v{36+4*i}, v{36+4*i}, v{38+4*i}", f"v_add_f32 v{37+4*i}, v{37+4*i}, v{39+4*i}"])
    a.e(["v_add_f32 v36, v36, v40", "v_add_f32 v37, v37, v41", "v_add_f32 v44, v44, v48", "v_add_f32 v45, v45, v49",
         "v_add_f32 v36, v36, v44", "v_add_f32 v37, v37, v45",
         f"v_mul_f32 v36, {hex(f2u(1/1024))}, v36", f"v_mul_f32 v37, {hex(f2u(1/1024))}, v37",
         "v_fma_f32 v37, -v36, v36, v37", "v_max_f32 v37, 0, v37",
         "v_cvt_pk_bf16_f32 v36, v36, v37",
         "v_and_b32 v37, 0xffff0000, v36", "v_lshlrev_b32 v36, 16, v36",
         f"v_add_f32 v37, {hex(f2u(1e-5))}, v37", "v_cvt_pk_bf16_f32 v37, v37, v37", "v_and_b32 v37, 0xffff0000, v37",
         "v_sqrt_f32 v37, v37"])
    for i in range(16): a.e(f"v_sub_f32 v{16+i}, v{16+i}, v36")
    a.e(["v_cvt_pk_bf16_f32 v37, v37, v37", "v_and_b32 v37, 0xffff0000, v37", "v_rcp_f32 v37, v37"])
    for i in range(8): a.e(f"v_cvt_pk_bf16_f32 v{8+i}, v{16+2*i}, v{17+2*i}")
    for i in range(8):
        a.e([f"v_lshlrev_b32 v{16+2*i}, 16, v{8+i}", f"v_and_b32 v{17+2*i}, 0xffff0000, v{8+i}",
             f"v_mul_f32 v{16+2*i}, v37, v{16+2*i}", f"v_mul_f32 v{17+2*i}, v37, v{17+2*i}",
             f"v_cvt_pk_bf16_f32 v{8+i}, v{16+2*i}, v{17+2*i}"])
        if i == 3: a.e(f"buffer_store_dwordx4 v[8:11], v5, {sr(sWS,4)}, s{sT0} offen{LST}")
    a.e(f"buffer_store_dwordx4 v[12:15], v5, {sr(sWS,4)}, s{sT1} offen{LST}")
    ts(a, 2); ts(a, 3)
    if PROF: a.e(["s_waitcnt vmcnt(0)", f"s_lshr_b32 s{sWave}, s{sWave}, 3"])
    ts(a, 4)
    ts_dump(a, 5, sWS, sWave, 3, sT0)
    a.e("s_endpgm")
    a.lab("ln_exit")
    a.e("s_endpgm")
    return kernel_desc(name, 64), f"; @launch kernel={name} grid=(256,1,1) block=(512,1,1) lds=512"
```

```python
import sys, os
from common import *
from gen_ln import gen_ln
from gen_g1 import gen_g1
from gen_at import gen_at
from gen_fin import gen_fin
from gen_af import gen_af
from gen_g2 import gen_g2

def build(kernels):
    a = Asm()
    descs = []; launches = []
    for g in kernels:
        d, l = g(a)
        descs.append(d); launches.append(l)
    hdr = "; generated by work/gen.py\n" + "\n".join(launches) + '\n.amdgcn_target "amdgcn-amd-amdhsa--gfx950"\n.text\n'
    return hdr + a.text() + '.section .rodata,"a"\n' + "".join(".p2align 6\n" + d for d in descs)

if __name__ == "__main__":
    out = sys.argv[1] if len(sys.argv) > 1 else "parallel_sum__softmax_full_mha__glu_gated_glu__prompt.s"
    ks = {'l': gen_ln, 'g': gen_g1, 'a': gen_at, 'f': gen_fin, 'F': gen_af, 'G': gen_g2}
    txt = build([ks[c] for c in os.environ.get('KS', 'GF')])
    al = os.environ.get('AL', '')
    if al:
        from align import align
        txt = align(txt, al.split(','), os.environ.get('ALPAD', '1') == '1')
    open(out, "w").write(txt)
    from lint import lint
    hz = lint(txt)
    for x in hz[:3]: print("HAZARD L%d->L%d %s need %d have %d\n    %s\n    %s" % x)
    if hz: print("  total hazards:", len(hz))
    print("wrote", out, len(txt), "bytes")
```

```python
from common import *
import os
PRA = int(os.environ.get('AF_PRA', '1'))
PRG = int(os.environ.get('AF_PRG', '0'))
SCHED = os.environ.get('AF_SCHED', "kReKeepeePeere")
AFX = os.environ.get('AFX', '')
BH = [int(v) for v in os.environ.get('AF_BH', '4,11,17,24,30,37,43,50').split(',')]
PRE = int(os.environ.get('AF_PRE', '4'))
NOB = int(os.environ.get('AF_NOB', '6'))
G16 = os.environ.get('AF_G16', '1') == '1'
AF_LDS = 163840
L_E = 65536
L_M = 65536 + 7 * 4096
L_W = 98304
M_C1, M_HW, M_CW1, M_CW2, M_F1, M_F2 = 0, 4, 8, 12, 16, 32

def wo_slot(h):
    if h < 7: return L_E + 4096 * h
    if h < 23: return 4096 * (h - 7)
    if h < 31: return L_W + 16384 * (((h - 23) >> 1) ^ 2) + 8192 + 4096 * ((h - 23) & 1)
    return L_W + 4096

class VM:
    def __init__(s): s.n = 0; s.last = {}
    def op(s, tag): s.n += 1; s.last[tag] = s.n
    def cnt(s, *tags): return min(63, s.n - max(s.last[t] for t in tags))

TSO = os.environ.get('AF_TS', '') == 'o'
def gen_af(a):
    ta = (lambda i: None) if TSO else (lambda i: ts(a, i))
    to = (lambda i: ts(a, i)) if TSO else (lambda i: None)
    name = "af_kernel"
    sX, sWD, sWO, sOUT, sWS = 16, 20, 24, 28, 32
    sWave, sMt, sNt, sT0, sT1, sCnt, sHead, sJ, sK, sDst, sOut = range(40, 51)
    kernel_head(a, name)
    a.e(["s_cmp_ge_u32 s2, 256", "s_cbranch_scc1 af_exit",
         "s_load_dwordx2 s[4:5], s[0:1], 0", "s_load_dwordx2 s[6:7], s[0:1], 16", "s_load_dwordx4 s[8:11], s[0:1], 48", "s_load_dwordx2 s[12:13], s[0:1], 72",
         "v_lshrrev_b32 v1, 6, v0", "v_and_b32 v0, 63, v0",
         f"v_readfirstlane_b32 s{sWave}, v1",
         f"s_lshr_b32 s{sT1}, s2, 3", f"s_and_b32 s{sT1}, s{sT1}, 3",
         f"s_and_b32 s{sHead}, s2, 7", f"s_lshl_b32 s{sHead}, s{sHead}, 2", f"s_add_u32 s{sHead}, s{sHead}, s{sT1}",
         f"s_bfe_u32 s{sMt}, s2, 0x20001", f"s_lshl_b32 s{sMt}, s{sMt}, 2", f"s_add_u32 s{sMt}, s{sMt}, s{sT1}",
         "v_lshlrev_b32 v1, 4, v0",
         f"s_and_b32 s{sJ}, s{sWave}, 3",
         f"s_lshl_b32 s{sDst}, s{sJ}, 13", f"s_lshl_b32 s{sK}, s{sHead}, 17", f"s_and_b32 s{sT0}, s{sDst}, 8192", f"s_add_u32 s{sK}, s{sK}, s{sT0}",
         f"s_cmp_ge_u32 s{sJ}, 2", f"s_cselect_b32 s{sT0}, {WS_V}, 0", f"s_max_u32 s{sT0}, s{sT0}, {WS_K}", f"s_add_u32 s{sK}, s{sK}, s{sT0}",
         f"s_and_b32 s{sNt}, s2, 1", f"s_lshl_b32 s{sNt}, s{sNt}, 3", f"s_lshr_b32 s{sT0}, s2, 5", f"s_xor_b32 s{sT0}, s{sT0}, {os.environ.get('AF_NX','0')}", f"s_add_u32 s{sNt}, s{sNt}, s{sT0}",
         f"s_cmp_ge_u32 s{sWave}, 4", "s_cbranch_scc1 af_gemm"])
    VL = 1
    def kvdma(p):
        o = []
        for hf in range(2):
            g = [[f"buffer_load_dwordx4 v{VL}, {sr(sWS,4)}, s{sK} offen offset:{1024*i} lds"] for i in range(4)]
            g[0] = [f"s_add_u32 m0, s{sDst}, {(p & 1) * 32768 + hf * 4096}", "s_nop 0"] + g[0]
            g[3] = g[3] + [f"s_add_u32 s{sK}, s{sK}, {4096 if hf == 0 else 12288}"]
            o += g
        return o
    def act_lane(d):
        return ["v_bfe_u32 v4, v0, 4, 1", f"v_mul_u32_u24 v4, {ACT_TB}, v4", "v_lshrrev_b32 v5, 5, v0", "v_lshl_add_u32 v4, v5, 8, v4",
                "v_and_b32 v5, 15, v0", f"v_lshl_add_u32 v{d}, v5, 4, v4"]
    def wread_lane(d):
        return ["v_lshrrev_b32 v5, 5, v0", "v_bfe_u32 v4, v0, 2, 2", "v_lshl_add_u32 v5, v5, 2, v4", "v_lshlrev_b32 v5, 7, v5",
                "v_lshrrev_b32 v4, 1, v4", "v_lshl_add_u32 v5, v4, 6, v5",
                "v_lshrrev_b32 v4, 1, v0", "v_xor_b32 v4, v4, v0", "v_bfe_u32 v4, v4, 4, 1", "v_lshl_add_u32 v5, v4, 5, v5",
                "v_and_b32 v4, 1, v0", "v_lshl_add_u32 v5, v4, 4, v5", "v_bfe_u32 v4, v0, 1, 1", f"v_lshl_add_u32 v{d}, v4, 3, v5"]
    def spin(lab, off, val, vaddr=6, cmp="lt"):
        a.lab(lab)
        a.e([f"ds_read_b32 v7, v{vaddr} offset:{off}", "s_waitcnt lgkmcnt(0)", f"v_readfirstlane_b32 s{sT1}, v7", "s_nop 0",
             f"s_cmp_lt_u32 s{sT1}, {val}", f"s_cbranch_scc1 {lab}"])

    sTB, sMode, sH, sH1, sB, sB0, sB1, sQB, sO = range(51, 60)
    VV = 2; VO = 3
    QF = lambda u: 8 + 4 * u
    KF = lambda p: 24 + 8 * p
    VF = lambda p: 40 + 8 * p
    SEL = 56; IDX = 60
    SS = lambda u: 64 + 8 * u
    OO = lambda u: 96 + 8 * u
    NM = lambda u: 128 + 4 * u
    LL = lambda u: 144 + 4 * u
    XR = 176
    smf = lambda d, a_, b: f"v_smfmac_f32_16x16x64_bf16 {vr(d,4)}, {vr(a_,4)}, {vr(b,8)}, v{IDX}"
    a.e([f"s_setprio {PRA}",
         f"s_lshr_b32 s{sQB}, s2, 5", f"s_xor_b32 s{sQB}, s{sQB}, {os.environ.get('AF_QX','0')}", f"s_lshl_b32 s{sTB}, s{sQB}, 2", f"s_add_u32 s{sTB}, s{sTB}, s{sWave}", f"s_lshl_b32 s{sTB}, s{sTB}, 1",
         f"s_lshl_b32 s{sT0}, s{sTB}, 11", f"s_lshl_b32 s{sT1}, s{sHead}, 17", f"s_add_u32 s{sT0}, s{sT0}, s{sT1}",
         "s_waitcnt lgkmcnt(0)"])
    ta(0)
    srd(a, sWS, 12, WS_BYTES)
    kv = kvdma(0)
    a.e(kv[:2])
    for i in range(4): a.e(f"buffer_load_dwordx4 {vr(QF(0)+4*i,4)}, v{VL}, {sr(sWS,4)}, s{sT0} offen offset:{1024*i}")
    a.e(kv[2:])
    a.e("s_barrier")
    srd(a, sX, 4, 2048 * 2048)
    srd(a, sOUT, 10, 2048 * 2048)
    a.e(act_lane(VV))
    a.e(["v_and_b32 v4, 3, v0", "v_cmp_eq_u32 vcc, 0, v4", "v_mov_b32 v4, 0x3f803f80", f"v_mov_b32 v{IDX}, 0xdddd"] +
        [f"v_cndmask_b32 v{SEL+r}, 0, v4, vcc" for r in range(4)])
    a.e([
         "v_and_b32 v4, 31, v0", "v_lshlrev_b32 v4, 11, v4", "v_lshrrev_b32 v5, 5, v0", f"v_lshl_add_u32 v{VO}, v5, 4, v4",
         f"s_lshl_b32 s{sOut}, s{sMt}, 18", f"s_lshl_b32 s{sT0}, s{sWave}, 16", f"s_add_u32 s{sOut}, s{sOut}, s{sT0}",
         f"s_lshl_b32 s{sT0}, s{sNt}, 7", f"s_add_u32 s{sOut}, s{sOut}, s{sT0}",
         "v_lshlrev_b32 v4, 2, v0", f"v_add_u32 v4, {L_M}, v4", "v_mov_b32 v5, 0", "ds_write_b32 v4, v5"])
    for r in range(32): a.e(f"v_mov_b32 v{OO(0)+r}, 0")
    for r in range(16): a.e(f"v_mov_b32 v{LL(0)+r}, 0")
    for r in range(8): a.e(f"v_mov_b32 v{VF(1)+r}, 0")
    kvo = lambda T: ((T >> 3) & 1) * 32768 + (T & 7) * 2048
    def kread(T): return [f"ds_read_b128 {vr(KF(T&1)+4*s,4)}, v{VL} offset:{kvo(T)+1024*s}" for s in range(2)]
    def vread(T): return [f"ds_read_b128 {vr(VF(T&1)+4*s,4)}, v{VL} offset:{kvo(T)+16384+1024*s}" for s in range(2)]
    a.e(["s_waitcnt vmcnt(0) lgkmcnt(0)", "s_barrier"])
    a.e(kread(0) + vread(0))
    for i in range(4): a.e(f"buffer_load_dwordx4 {vr(XR+4*i,4)}, v{VO}, {sr(sX,4)}, s{sOut} offen offset:{32*i}")
    a.e(["s_waitcnt lgkmcnt(2)"])
    for u in range(4): a.e([mfma16(SS(u) + 4 * kb, KF(0) + 4 * kb, QF(u), "0") for kb in range(2)])
    def rowmax(d, S, first=True):
        return ([f"v_max3_f32 v{d}, v{S}, v{S+1}, v{S+2}", f"v_max3_f32 v{d}, v{d}, v{S+3}, v{S+4}", f"v_max3_f32 v{d}, v{d}, v{S+5}, v{S+6}", f"v_max_f32 v{d}, v{d}, v{S+7}"] if first else
                [f"v_max3_f32 v{d}, v{d}, v{S+2*i}, v{S+1+2*i}" for i in range(4)])
    def negmax(us):
        o = []
        for sw in (32, 16):
            o += [f"v_mov_b32 v{NM(u)+1}, v{NM(u)}" for u in us] + ["s_nop 1"] + [f"v_permlane{sw}_swap_b32 v{NM(u)}, v{NM(u)+1}" for u in us] + ["s_nop 0"]
            o += [f"v_max_f32 v{NM(u)}, v{NM(u)}, v{NM(u)+1}" for u in us]
        return o + [f"v_sub_f32 v{NM(u)+r}, 0, v{NM(u)}" for r in (3, 2, 1, 0) for u in us]
    a.e(["s_nop 1"])
    for u in range(4): a.e(rowmax(NM(u), SS(u)))
    a.e(negmax(range(4)))
    for u in range(2): a.e([f"v_add_f32 v{SS(u)+r}, v{SS(u)+r}, v{NM(u)}" for r in range(8)])
    a.e([f"v_mov_b32 v{SS(3)+r}, 0" for r in range(8)])
    a.e(f"s_mov_b32 s{sCnt}, 4")
    ta(1)
    a.e("s_waitcnt lgkmcnt(0)")
    a.raw(".p2align 6")
    a.lab("af_aloop")
    scheds = SCHED.split(',')
    for n in range(64):
        t = n >> 2; u = n & 3
        ex = [f"v_exp_f32 v{SS(u)+i}, v{SS(u)+i}" for i in range(8)]
        up = (u - 1) & 3; tp = (n - 1) >> 2; un = (u + 2) & 3; tn = (n + 2) >> 2
        M = {'p': smf(OO(up), VF(tp & 1), SS(up)), 'P': smf(OO(up) + 4, VF(tp & 1) + 4, SS(up)), 'r': smf(LL(up), SEL, SS(up)),
             'k': mfma16(SS(un), KF(tn & 1), QF(un), NM(un)), 'K': mfma16(SS(un) + 4, KF(tn & 1) + 4, QF(un), NM(un))}
        w = u == 2
        for c in scheds[u % len(scheds)]:
            if c in 'kK' and w:
                w = False
                a.e("s_waitcnt lgkmcnt(0)")
                if (t & 7) == 6: a.e("s_barrier")
            if 'a' in AFX: continue
            if c in M: a.e(M[c])
            elif c == 'e': a.e(ex.pop(0))
            elif c == 'n': a.e("s_nop 0")
            elif c in 'lh': a.e(f"s_setprio {0 if c == 'l' else PRA}")
            elif c == 'R':
                if u < 2: a.e(vread(t + 1) if u else kread(t + 1))
                elif n == 63: a.e([f"s_sub_u32 s{sCnt}, s{sCnt}, 1", f"s_cmp_lg_u32 s{sCnt}, 0"])
        assert 'a' in AFX or not ex
    if 'a' in AFX: a.e([f"s_sub_u32 s{sCnt}, s{sCnt}, 1", f"s_cmp_lg_u32 s{sCnt}, 0"])
    a.e("s_cbranch_scc1 af_aloop")
    a.e(["s_nop 0", smf(OO(3), VF(1), SS(3)), smf(OO(3) + 4, VF(1) + 4, SS(3)), smf(LL(3), SEL, SS(3)), "s_waitcnt vmcnt(0)"])
    ta(2)
    a.e([f"v_max3_f32 v4, |v{OO(0)}|, |v{OO(0)+1}|, |v{OO(0)+2}|"] + [f"v_max3_f32 v4, v4, |v{OO(0)+3+2*i}|, |v{OO(0)+4+2*i}|" for i in range(14)] + [f"v_max_f32 v4, v4, |v{OO(0)+31}|",
         f"v_add_f32 v5, v{LL(0)}, v{LL(1)}", f"v_add_f32 v6, v{LL(2)}, v{LL(3)}", "v_add_f32 v5, v5, v6", f"v_mov_b32 v6, {hex(f2u(2.0**126))}",
         f"v_cmp_ngt_f32 vcc, {hex(f2u(2.0**24))}, v5", "v_cmp_nlt_f32 s[62:63], v4, v6",
         "s_nop 1", "s_or_b64 vcc, vcc, s[62:63]", "s_cmp_lg_u64 vcc, 0",
         "s_cbranch_scc1 af_redo"])
    def ostore(nu, sb, sh):
        o = [f"v_rcp_f32 v{LL(u)}, v{LL(u)}" for u in range(nu)]
        o += [f"s_mul_i32 s{sT0}, s{sb}, {2*ACT_TB}", f"s_lshl_b32 s{sT1}, s{sh}, 10", f"s_add_u32 s{sT0}, s{sT0}, s{sT1}", f"s_add_u32 s{sT0}, s{sT0}, {WS_ACT + 112*1024}"]
        for u in range(nu):
            o += [f"v_mul_f32 v{OO(u)+r}, v{LL(u)}, v{OO(u)+r}" for r in range(8)]
            o += [f"v_cvt_pk_bf16_f32 v{SS(u)+r}, v{OO(u)+2*r}, v{OO(u)+2*r+1}" for r in range(4)]
            o += [f"buffer_store_dwordx4 {vr(SS(u),4)}, v{VL}, {sr(sWS,4)}, s{sT0} offen sc1"]
            if u + 1 < nu: o += [f"s_add_u32 s{sT0}, s{sT0}, {ACT_TB}"]
        return o
    a.e(ostore(4, sTB, sHead))
    AC2 = lambda cb: 16 + 16 * cb
    AF2 = lambda s, cb: 48 + 8 * s + 4 * cb
    OB = lambda h, s: 64 + 8 * (h % NOB) + 4 * s
    VA = lambda cb: 8 + cb
    def prep():
        o = []
        for i in range(16): o += [f"v_lshlrev_b32 v{AC2(0)+2*i}, 16, v{XR+i}", f"v_and_b32 v{AC2(0)+2*i+1}, 0xffff0000, v{XR+i}"]
        o += wread_lane(10) + [f"v_add_u32 v{VA(0)}, 0x10000, v10", f"v_xor_b32 v{VA(1)}, 64, v{VA(0)}", f"v_mov_b32 v6, {L_M}",
              f"s_lshl_b32 s{sO}, s{sMt}, 2", f"s_add_u32 s{sO}, s{sO}, s{sWave}", f"s_mul_i32 s{sO}, s{sO}, {2*ACT_TB}", f"s_add_u32 s{sO}, s{sO}, {WS_ACT + 112*1024}"]
        return o
    a.lab("af_signal")
    a.e(prep())
    a.e(["v_mov_b32 v5, 1", "s_mov_b64 exec, 1",
         f"s_lshl_b32 s{sT0}, s{sQB}, 5", f"s_add_u32 s{sT0}, s{sT0}, s{sHead}", f"s_lshl_b32 s{sT0}, s{sT0}, 2", f"s_add_u32 s{sT0}, s{sT0}, {WS_FLAG}",
         "v_mov_b32 v4, 0",
         "s_waitcnt vmcnt(0) lgkmcnt(0)", f"ds_add_rtn_u32 v7, v6, v5 offset:{M_C1}",
         "s_waitcnt lgkmcnt(0)", f"v_readfirstlane_b32 s{sT1}, v7", "s_nop 0", f"s_cmp_lg_u32 s{sT1}, 3", "s_cbranch_scc1 af_nosig",
         f"buffer_store_dword v5, v4, {sr(sWS,4)}, s{sT0} offen sc1"])
    ta(3)
    a.e(["s_mov_b64 exec, -1", "v_and_b32 v4, 31, v0", "v_lshlrev_b32 v4, 2, v4",
         f"s_lshr_b32 s{sT0}, s{sMt}, 1", f"s_lshl_b32 s{sT0}, s{sT0}, 7", f"s_add_u32 s{sT0}, s{sT0}, {WS_FLAG}", f"s_mov_b32 s{sCnt}, {os.environ.get('AF_TO', '3000')}"])
    a.lab("af_poll")
    a.e([f"buffer_load_dword v5, v4, {sr(sWS,4)}, s{sT0} offen sc1", "v_mov_b32 v7, 1", "s_waitcnt vmcnt(0)", "v_cmp_eq_u32 vcc, 0, v5", "s_nop 1",
         "s_cmp_eq_u64 vcc, 0", "s_cbranch_scc1 af_pok",
         "s_sleep 2", f"s_sub_u32 s{sCnt}, s{sCnt}, 1", f"s_cmp_lg_u32 s{sCnt}, 0", "s_cbranch_scc1 af_poll",
         "v_mov_b32 v7, 2", f"ds_write_b32 v6, v7 offset:{M_HW}"])
    a.lab("af_tmo")
    a.e([f"s_mov_b32 s{sMode}, 1", f"s_mov_b32 s{sH}, 0", f"s_mov_b32 s{sH1}, 32",
         f"s_lshl_b32 s{sB0}, s{sMt}, 2", f"s_add_u32 s{sB0}, s{sB0}, s{sWave}", f"s_add_u32 s{sB1}, s{sB0}, 1", "s_branch af_slow"])
    a.lab("af_nosig")
    ta(3)
    a.e(["s_mov_b64 exec, -1", "s_setprio 0"])
    spin("af_hw", M_HW, 1)
    a.e([f"s_setprio {PRA}", f"s_cmp_eq_u32 s{sT1}, 2", "s_cbranch_scc1 af_tmo", "s_branch af_oph"])
    a.lab("af_pok")
    a.e(f"ds_write_b32 v6, v7 offset:{M_HW}")
    a.lab("af_oph")
    ta(4); to(0)
    vm = VM()
    def oload(h):
        o = []
        if h and h % 4 == 0: o.append(f"s_add_u32 s{sO}, s{sO}, 4096")
        for s in range(2):
            o.append(f"buffer_load_dwordx4 {vr(OB(h,s),4)}, v{VV}, {sr(sWS,4)}, s{sO} offen offset:{(h%4)*1024 + 512*s} sc1"); vm.op(('o', h, s))
        return o
    base = [0x10000]
    def ar2(h, s, cb):
        o = []
        sl = wo_slot(h)
        if s == 0 and cb == 0 and not (0 <= sl - base[0] <= 0x10000 - 4096):
            base[0] = sl & ~0x7fff
            o += [f"v_add_u32 v{VA(0)}, {base[0]}, v10", f"v_xor_b32 v{VA(1)}, 64, v{VA(0)}"]
        return o + [f"ds_read_b64_tr_b16 {vr(AF2(s,cb)+2*hf,2)}, v{VA(cb)} offset:{sl - base[0] + 1024*s + 2048*hf}" for hf in range(2)]
    for h in range(NOB): a.e(oload(h))
    for s in range(2):
        for cb in range(2): a.e(ar2(0, s, cb))
    for h in range(32):
        if h + 1 == 15: spin("af_w1", M_CW1, 4)
        if h + 1 == 23: spin("af_w2", M_CW2, 4)
        fresh = h + 1 in (15, 23)
        for s in range(2):
            for cb in range(2):
                w = []
                if cb == 0: w.append(f"vmcnt({vm.cnt(('o', h, s))})")
                if not fresh: w.append(f"lgkmcnt({6 if h < 31 else 6 - 2 * (2 * s + cb)})")
                if w: a.e("s_waitcnt " + " ".join(w))
                a.e(mfma32(AC2(cb), AF2(s, cb), OB(h, s)))
                if h < 31: a.e(ar2(h + 1, s, cb))
        if h + NOB < 32: a.e(oload(h + NOB))
        if h in (0, 11, 22, 31): to(1 + (0, 11, 22, 31).index(h))
        if h == 29:
            a.e([f"s_xor_b32 s{sT0}, s{sWave}, 3", f"s_lshl_b32 s{sT0}, s{sT0}, 14", f"s_add_u32 s{sT0}, s{sT0}, {L_W}", f"v_add_u32 v11, s{sT0}, v{VL}"])
    RB = OB(8, 0) if NOB > 18 else 64 + 8 * NOB
    for q in range(4): a.e(f"ds_read_b128 {vr(RB+4*q,4)}, v11 offset:{1024*q}")
    for q in range(4):
        a.e(f"s_waitcnt lgkmcnt({3-q})")
        for r in range(4): a.e([f"v_lshlrev_b32 v{RB+16+8*q+2*r}, 16, v{RB+4*q+r}", f"v_and_b32 v{RB+17+8*q+2*r}, 0xffff0000, v{RB+4*q+r}"])
    for q in range(4):
        for r in range(8): a.e(f"v_add_f32 v{AC2(0)+8*q+r}, v{AC2(0)+8*q+r}, v{RB+16+8*q+r}")
        for r in range(4): a.e(f"v_cvt_pk_bf16_f32 v{RB+4*q+r}, v{AC2(0)+8*q+2*r}, v{AC2(0)+8*q+2*r+1}")
        a.e(f"buffer_store_dwordx4 {vr(RB+4*q,4)}, v{VO}, {sr(sOUT,4)}, s{sOut} offen offset:{32*q}")
    if PROF: a.e("s_waitcnt vmcnt(0)")
    ts(a, 5)
    ts_dump(a, 6, sWS, sWave, 1, sT0)
    a.e("s_endpgm")
    a.lab("af_redo")
    a.e([f"s_mov_b32 s{sMode}, 0", f"s_mov_b32 s{sH}, s{sHead}", f"s_add_u32 s{sH1}, s{sHead}, 1", f"s_mov_b32 s{sB0}, s{sTB}", f"s_add_u32 s{sB1}, s{sTB}, 2"])
    a.lab("af_slow")
    a.e([f"s_mov_b32 s{sB}, s{sB0}", "s_waitcnt vmcnt(0) lgkmcnt(0)"])
    a.lab("af_slow_b")
    ld2 = lambda d, so: [f"buffer_load_dwordx4 {vr(d+4*i,4)}, v{VL}, {sr(sWS,4)}, s{so} offen offset:{1024*i}" for i in range(2)]
    a.e([f"s_lshl_b32 s{sK}, s{sH}, 17", f"s_lshl_b32 s{sT0}, s{sB}, 11", f"s_add_u32 s{sT0}, s{sT0}, s{sK}"] + ld2(QF(0), sT0) +
        [f"s_add_u32 s{sK}, s{sK}, {WS_K}", f"s_mov_b32 s{sT0}, s{sK}", f"s_mov_b32 s{sCnt}, 64", f"v_mov_b32 v{NM(0)}, 0xff800000", f"v_mov_b32 v{NM(1)}, 0xff800000",
         "v_and_b32 v4, 3, v0", "v_cmp_eq_u32 vcc, 0, v4", "v_mov_b32 v4, 0x3f803f80", f"v_mov_b32 v{IDX}, 0xdddd"] + [f"v_cndmask_b32 v{SEL+r}, 0, v4, vcc" for r in range(4)])
    a.lab("af_slow_p1")
    a.e(ld2(KF(0), sT0) + ["s_waitcnt vmcnt(0)"] + [mfma16(SS(u) + 4 * kb, KF(0) + 4 * kb, QF(u), "0") for u in range(2) for kb in range(2)] + ["s_nop 7"])
    for u in range(2): a.e(rowmax(NM(u), SS(u), False))
    a.e([f"s_add_u32 s{sT0}, s{sT0}, 2048", f"s_sub_u32 s{sCnt}, s{sCnt}, 1", f"s_cmp_lg_u32 s{sCnt}, 0", "s_cbranch_scc1 af_slow_p1"])
    a.e(negmax(range(2)))
    for r in range(16): a.e(f"v_mov_b32 v{OO(0)+r}, 0")
    for r in range(8): a.e(f"v_mov_b32 v{LL(0)+r}, 0")
    a.e([f"s_mov_b32 s{sCnt}, 64"])
    a.lab("af_slow_p2")
    a.e([f"s_add_u32 s{sT0}, s{sK}, {WS_V - WS_K}"] + ld2(KF(0), sK) + ld2(VF(0), sT0) + ["s_waitcnt vmcnt(0)"] +
        [mfma16(SS(u) + 4 * kb, KF(0) + 4 * kb, QF(u), NM(u)) for u in range(2) for kb in range(2)] + ["s_nop 7"])
    a.e([f"v_exp_f32 v{SS(0)+i}, v{SS(0)+i}" for i in range(16)] + ["s_nop 1"])
    for u in range(2): a.e([smf(OO(u), VF(0), SS(u)), smf(OO(u) + 4, VF(0) + 4, SS(u)), smf(LL(u), SEL, SS(u))])
    a.e([f"s_add_u32 s{sK}, s{sK}, 2048", f"s_sub_u32 s{sCnt}, s{sCnt}, 1", f"s_cmp_lg_u32 s{sCnt}, 0", "s_nop 7", "s_cbranch_scc1 af_slow_p2"])
    a.e(ostore(2, sB, sH))
    a.e(["s_waitcnt vmcnt(0)",
         f"s_add_u32 s{sB}, s{sB}, 1", f"s_cmp_lt_u32 s{sB}, s{sB1}", "s_cbranch_scc1 af_slow_b",
         f"s_add_u32 s{sH}, s{sH}, 1", f"s_cmp_lt_u32 s{sH}, s{sH1}", "s_cbranch_scc1 af_slow",
         f"s_cmp_eq_u32 s{sMode}, 0", "s_cbranch_scc1 af_signal"])
    a.e(prep())
    a.e("s_branch af_oph")

    assert not REPACK
    sA, sWo, sDw, sWq, sR2, sJ13, sA2 = range(51, 58)
    ACC = lambda cb, ti: 128 + 32 * ti + 16 * cb
    BF = lambda b, s, ti: 32 + 32 * b + 16 * s + 4 * ti
    AF = lambda s, cb: 16 + 8 * s + 4 * cb
    VB = lambda ti: 8 + ti
    VW = lambda i: 12 + i
    VG = lambda cb: 2 + cb
    NBODY = 28
    a.raw(".p2align 6")
    a.lab("af_gemm")
    a.e(f"s_setprio {PRG}")
    if REPACK: a.e([f"s_lshl_b32 s{sWq}, s{sNt}, 12", f"s_add_u32 s{sWq}, s{sWq}, {WS_WP}"])
    else:
        a.e(["v_lshrrev_b32 v4, 3, v0", "v_and_b32 v5, 7, v0", "v_and_b32 v6, 2, v4", "v_lshlrev_b32 v6, 1, v6", "v_xor_b32 v5, v5, v6",
         "v_lshrrev_b32 v6, 1, v4", "v_and_b32 v6, 2, v6", "v_xor_b32 v5, v5, v6",
         "v_lshlrev_b32 v4, 11, v4", f"v_lshl_add_u32 v{VW(0)}, v5, 4, v4"] +
        [f"v_add_u32 v{VW(i)}, {i*(16384-1024)}, v{VW(0)}" for i in range(1, 4)] + [f"s_lshl_b32 s{sWq}, s{sNt}, 7"])
    a.e([f"s_lshl_b32 s{sT0}, s{sJ}, 16", f"s_add_u32 s{sWo}, s{sWq}, s{sT0}",
         f"s_add_u32 s{sWq}, s{sWo}, s{sT0}",
         f"s_lshl_b32 s{sDw}, s{sJ}, 14", f"s_xor_b32 s{sR2}, s{sDw}, 0x8000", f"s_add_u32 s{sDw}, s{sDw}, {L_W}", f"s_add_u32 s{sR2}, s{sR2}, {L_W}",
         f"s_add_u32 s{sK}, s{sK}, 16384",
         f"s_mul_i32 s{sA}, s{sMt}, {8*ACT_TB}", f"s_lshl_b32 s{sT0}, s{sJ}, 10", f"s_add_u32 s{sA}, s{sA}, s{sT0}", f"s_add_u32 s{sA}, s{sA}, {WS_ACT}"])
    if not G16: a.e(act_lane(6))
    for ti in range(4):
        a.e([f"s_xor_b32 s{sT0}, s{sJ}, {ti}", f"s_mul_i32 s{sT0}, s{sT0}, {2*ACT_TB}", f"v_add_u32 v{VB(ti)}, s{sT0}, v{VL if G16 else 6}"])
    if G16:
        a.e([f"s_add_u32 s{sA2}, s{sA}, {ACT_TB}",
             "v_lshrrev_b32 v6, 2, v0", "v_lshlrev_b32 v6, 7, v6", "v_bfe_u32 v7, v0, 3, 1", "v_lshl_add_u32 v6, v7, 6, v6",
             "v_bfe_u32 v7, v0, 4, 1", "v_lshl_add_u32 v6, v7, 5, v6", "v_and_b32 v7, 3, v0", "v_lshl_add_u32 v6, v7, 3, v6",
             f"v_add_u32 v{VG(0)}, s{sDw}, v6"] + [f"v_xor_b32 v{VG(cb)}, {32*cb}, v{VG(0)}" for cb in range(1, 4)] + ["s_waitcnt lgkmcnt(0)"])
    else:
        a.e(wread_lane(6))
        a.e([f"v_add_u32 v{VG(0)}, s{sDw}, v6", f"v_xor_b32 v{VG(1)}, 64, v{VG(0)}", "s_waitcnt lgkmcnt(0)"])
    ts(a, 0)
    if not REPACK: srd(a, sWD, 8, 3584 * 2048)
    srd(a, sWS, 12, WS_BYTES)
    if not REPACK: srd(a, sWO, 6, 1024 * 2048)
    vm = VM()
    def tag(items, t):
        return [(g, t) for g in items]
    def emit(it):
        a.e(it[0]); vm.op(it[1])
    def wdma(i):
        o = [[f"buffer_load_dwordx4 v{VL if REPACK else VW(k)}, {sr(sWS if REPACK else sWD,4)}, s{sWo} offen offset:{1024*k} lds"] for k in range(4)]
        o[0] = [f"s_add_u32 m0, s{sDw}, {(i & 3) * 4096}", "s_nop 0"] + o[0]
        o[3] = o[3] + [f"s_add_u32 s{sWo}, s{sWo}, 262144"]
        return tag(o, ('w', i))
    def wodma(sbase, ldsoff, head, t):
        o = [[f"buffer_load_dwordx4 v{VL if REPACK else VW(k)}, {sr(sWS if REPACK else sWO,4)}, s{sT1} offen offset:{1024*k} lds"] for k in range(4)]
        o[0] = [f"s_add_u32 m0, s{sbase}, {ldsoff}", f"s_add_u32 s{sT1}, s{sWq}, {((112 if REPACK else 0) + head) * 65536}"] + o[0]
        return tag(o, t)
    def bload(i, s):
        o = [[f"buffer_load_dwordx4 {vr(BF(i%3,s,ti),4)}, v{VB(ti)}, {sr(sWS,4)}, s{sA} offen offset:{512*s}"] for ti in range(4)]
        if G16:
            sa = sA2 if s else sA
            o = [[f"buffer_load_dwordx4 {vr(BF(i%3,s,ti),4)}, v{VB(ti)}, {sr(sWS,4)}, s{sa} offen"] for ti in range(4)]
            o[3] = o[3] + [f"s_add_u32 s{sa}, s{sa}, 4096"]
        elif s: o[3] = o[3] + [f"s_add_u32 s{sA}, s{sA}, 4096"]
        return tag(o, ('b', i, s))
    def aread(s, cb, i):
        if G16: return [f"ds_read_b64_tr_b16 {vr(AF(s,cb)+2*hf,2)}, v{VG(2*s+cb)} offset:{(i&3)*4096 + 2048*hf}" for hf in range(2)]
        return [f"ds_read_b64_tr_b16 {vr(AF(s,cb)+2*hf,2)}, v{VG(cb)} offset:{(i&3)*4096 + 1024*s + 2048*hf}" for hf in range(2)]
    kv1 = tag(kvdma(1), ('kv', 1))
    pro = [wdma(0), bload(0, 0), bload(0, 1), wdma(1), bload(1, 0), bload(1, 1), wdma(2), kv1[:4], bload(2, 0), bload(2, 1), wdma(3), kv1[4:]]
    a.e("s_barrier")
    for g in pro[:PRE]:
        for it in g: emit(it)
    a.e("s_barrier")
    ts(a, 1)
    for g in pro[PRE:]:
        for it in g: emit(it)
    a.e(f"s_waitcnt vmcnt({vm.cnt(('w', 0))})")
    for s in range(2):
        for cb in range(2): a.e(aread(s, cb, 0))
    extra = []
    early = [wodma(sDst, L_E, 0, 'e0'), 'e1']
    cw1 = [None]
    def barrier(p):
        assert not extra, "pending dma at barrier"
        a.e([f"s_waitcnt vmcnt({vm.cnt(('kv', p + 1))})", "s_barrier"])
        if p < 6:
            g = tag(kvdma(p + 2), ('kv', p + 2)); extra.extend([g[:4], g[4:]])
        else:
            for n in range(2): extra.append(wodma(sDst, (p & 1) * 32768 + 4096 * n, 7 + 8 * (p & 1) + n, ('kv', p + 2)))
        if p == 7: ts(a, 2)
    for i in range(NBODY):
        b = i % 3
        mm = lambda s, cb: [mfma32(ACC(cb, ti), AF(s, cb), BF(b, s, ti), "0" if (i == 0 and s == 0) else None) if 'g' not in AFX else [] for ti in range(4)]
        more = i + 1 < NBODY
        rd = lambda s, cb: a.e(aread(s, cb, i + 1)) if more else None
        def group(ms, its):
            for ti, m in enumerate(ms):
                a.e(m)
                if its: emit(its[ti])
        def xtra():
            if extra: return extra.pop(0)
            if early and 2 * i > BH[0]:
                g = early.pop(0)
                if g != 'e1': return g
                a.e([f"s_cmp_eq_u32 s{sJ}, 3", "s_cbranch_scc1 af_ge1"])
                for it in wodma(sDst, L_E + 4096, 1, 'e1'): a.e(it[0])
                a.lab("af_ge1")
            return None
        def sig1(*tags):
            if cw1[0] is None and ('kv', 9) in vm.last and not extra and vm.last[('kv', 9)] <= max(vm.last[t] for t in tags):
                cw1[0] = i
                a.e([f"v_mov_b32 v6, {L_M}", "v_mov_b32 v7, 1", "s_mov_b64 exec, 1", f"ds_add_u32 v6, v7 offset:{M_CW1}", "s_mov_b64 exec, -1", "s_waitcnt lgkmcnt(0)"])
        if G16:
            m16 = lambda u, c4: [mfma16(128 + 32 * ti + 16 * u + 4 * c4, 16 + 4 * c4, BF(b, u, ti), "0" if i == 0 else None) if 'g' not in AFX else [] for ti in range(4)]
            def grp2(ms, its):
                for ti, m in enumerate(ms):
                    a.e(m)
                    if its and (ti & 1): emit(its.pop(0))
            if 2 * i in BH: barrier(BH.index(2 * i))
            a.e(f"s_waitcnt vmcnt({vm.cnt(('b', i, 0))}) lgkmcnt(6)")
            x = xtra(); x = list(x) if x else None
            grp2(m16(0, 0), x)
            a.e("s_waitcnt lgkmcnt(4)")
            grp2(m16(0, 1), x)
            a.e("s_waitcnt lgkmcnt(2)")
            group(m16(0, 2), None)
            a.e("s_waitcnt lgkmcnt(0)")
            group(m16(0, 3), bload(i + 3, 0) if i + 3 < NBODY else xtra())
            if 2 * i + 1 in BH: barrier(BH.index(2 * i + 1))
            tg = [('b', i, 1)] + ([('w', i + 1)] if more else [])
            a.e(f"s_waitcnt vmcnt({vm.cnt(*tg)})")
            sig1(*tg)
            x = wdma(i + 4) if i + 4 < NBODY else xtra(); x = list(x) if x else None
            grp2(m16(1, 0), x); rd(0, 0)
            grp2(m16(1, 1), x); rd(0, 1)
            group(m16(1, 2), None); rd(1, 0)
            group(m16(1, 3), bload(i + 3, 1) if i + 3 < NBODY else xtra()); rd(1, 1)
            continue
        if 2 * i in BH: barrier(BH.index(2 * i))
        a.e(f"s_waitcnt vmcnt({vm.cnt(('b', i, 0), *([('w', i + 1)] if more else []))}) lgkmcnt(6)")
        if cw1[0] is None and ('kv', 9) in vm.last and not extra and vm.last[('kv', 9)] <= max(vm.last[('b', i, 0)], vm.last[('w', min(i + 1, NBODY - 1))]):
            cw1[0] = i
            a.e([f"v_mov_b32 v6, {L_M}", "v_mov_b32 v7, 1", "s_mov_b64 exec, 1", f"ds_add_u32 v6, v7 offset:{M_CW1}", "s_mov_b64 exec, -1", "s_waitcnt lgkmcnt(0)"])
        group(mm(0, 0), xtra()); rd(0, 0)
        a.e(f"s_waitcnt lgkmcnt({6 if more else 4})")
        group(mm(0, 1), bload(i + 3, 0) if i + 3 < NBODY else xtra()); rd(0, 1)
        if 2 * i + 1 in BH: barrier(BH.index(2 * i + 1))
        a.e(f"s_waitcnt vmcnt({vm.cnt(('b', i, 1))}) lgkmcnt({4 if more else 0})")
        group(mm(1, 0), wdma(i + 4) if i + 4 < NBODY else xtra()); rd(1, 0)
        group(mm(1, 1), bload(i + 3, 1) if i + 3 < NBODY else xtra()); rd(1, 1)
    for p in range(8):
        if BH[p] >= 2 * NBODY:
            barrier(p)
            while extra:
                for it in extra.pop(0): emit(it)
    assert not extra and not early
    ts(a, 3)
    a.e([f"v_mov_b32 v6, {L_M}", "v_mov_b32 v7, 1", f"v_add_u32 v4, s{sDw}, v{VL}", f"v_add_u32 v5, s{sR2}, v{VL}",
         f"s_lshl_b32 s{sT0}, s{sJ}, 2", f"v_add_u32 v8, s{sT0}, v6", f"v_xor_b32 v9, 8, v8", f"v_xor_b32 v10, 4, v8",
         f"s_xor_b32 s{sJ13}, s{sR2}, 0x4000", f"v_add_u32 v11, s{sJ13}, v{VL}"])
    if cw1[0] is None:
        a.e(["s_mov_b64 exec, 1", "s_waitcnt vmcnt(0)", f"ds_add_u32 v6, v7 offset:{M_CW1}", "s_mov_b64 exec, -1"])
    else: a.e("s_nop 1")
    for q in range(16): a.e(f"ds_write_b128 v4, {vr(ACC(0,2)+4*q,4)} offset:{1024*q}")
    a.e(["s_waitcnt lgkmcnt(0)", f"ds_write_b32 v8, v7 offset:{M_F1}"])
    spin("af_r1", M_F1, 1, vaddr=9)
    for q in list(range(8, 16)) + list(range(8)): a.e(f"ds_read_b128 {vr(ACC(0,2)+4*q,4)}, v5 offset:{1024*q}")
    for q in range(8):
        a.e(f"s_waitcnt lgkmcnt({15-q})")
        for r in range(4): a.e(f"v_add_f32 v{ACC(0,1)+4*q+r}, v{ACC(0,1)+4*q+r}, v{ACC(0,3)+4*q+r}")
    a.e("s_waitcnt lgkmcnt(0)")
    for q in range(8): a.e(f"ds_write_b128 v5, {vr(ACC(0,1)+4*q,4)} offset:{1024*q}")
    for n in range(2):
        for it in wodma(sR2, 8192 + 4096 * n, 23 + n, 'l'): a.e(it[0])
    a.e(["v_mov_b32 v7, 1", "s_waitcnt lgkmcnt(0)", f"ds_write_b32 v8, v7 offset:{M_F2}"])
    for r in range(32): a.e(f"v_add_f32 v{ACC(0,0)+r}, v{ACC(0,0)+r}, v{ACC(0,2)+r}")
    spin("af_r2", M_F2, 1, vaddr=10)
    for q in range(8): a.e(f"ds_read_b128 {vr(ACC(0,1)+4*q,4)}, v11 offset:{1024*q}")
    for q in range(8):
        a.e(f"s_waitcnt lgkmcnt({7-q})")
        if q == 7:
            a.e([f"s_cmp_lg_u32 s{sJ}, 3", "s_cbranch_scc1 af_gl9"])
            for it in wodma(sJ13, 4096, 25, 'l'): a.e(it[0])
            a.lab("af_gl9")
        for r in range(4): a.e(f"v_add_f32 v{ACC(0,0)+4*q+r}, v{ACC(0,0)+4*q+r}, v{ACC(0,1)+4*q+r}")
        for r in range(2): a.e(f"v_cvt_pk_bf16_f32 v{16+2*q+r}, v{ACC(0,0)+4*q+2*r}, v{ACC(0,0)+4*q+2*r+1}")
    if G16:
        a.e(["v_lshrrev_b32 v4, 5, v0", "v_lshlrev_b32 v4, 9, v4", "v_and_b32 v5, 15, v0", "v_lshl_add_u32 v4, v5, 4, v4", "v_bfe_u32 v5, v0, 4, 1", "v_lshl_add_u32 v4, v5, 3, v4",
             f"v_add_u32 v4, s{sJ13}, v4"])
        for q in range(8): a.e(f"ds_write_b64 v4, {vr(16+2*q,2)} offset:{1024*(q&3) + 256*(q>>2)}")
    else:
        for q in range(4): a.e(f"ds_write_b128 v11, {vr(16+4*q,4)} offset:{1024*q}")
    ts(a, 4)
    a.e(["v_mov_b32 v7, 1", "s_mov_b64 exec, 1", "s_waitcnt vmcnt(0) lgkmcnt(0)", f"ds_add_u32 v6, v7 offset:{M_CW2}", "s_mov_b64 exec, -1", "s_waitcnt lgkmcnt(0)"])
    ts(a, 5)
    ts_dump(a, 6, sWS, sWave, 1, sT0)
    a.e("s_endpgm")
    a.lab("af_exit")
    a.e("s_endpgm")
    return kernel_desc(name, 256), f"; @launch kernel={name} grid=(256,1,1) block=(512,1,1) lds={AF_LDS}"
```

```python
from common import *
import os
G1X = os.environ.get('G1X', '')
ST = os.environ.get('ST', ' sc1')

G1_WST = 20480
G1_XR = 4 * G1_WST
G1_XST = 16384
G1_PF = G1_XR + 4 * G1_XST
G1_LDS = G1_PF
PF = os.environ.get('G1PF', '1') == '1'
PF0 = int(os.environ.get('G1PF0', '128'))
RAMP = int(os.environ.get('G1RAMP', '2'))
RPS = int(os.environ.get('G1RPS', '1'))
WSN = WS_WP + (9 << 20)
ZS = int(os.environ.get('G1ZS', '1' if REPACK else '28'))
AB = os.environ.get('G1AB', '')
RST = os.environ.get('RST', ' sc1')

def gen_g1(a):
    name = "g1_kernel"
    ACC = lambda b, tb: 96 + (b * 4 + tb) * 4
    AF = lambda b: 16 + 4 * b
    BF = lambda p, tb: 56 + 16 * p + 4 * tb
    VA = 1; VB = 11; VD = 88
    sWQ, sWG, sWU, sGU, sWS = 20, 24, 28, 32, 36
    sWave, sMw, sNw, sMt, sNt, sP, sIsA, sF0 = 40, 41, 42, 43, 44, 45, 46, 47
    sQ, sG, sT0, sT1, sT2, sCnt, sDst, sXs, sRs, sRd = 48, 49, 50, 51, 52, 53, 54, 55, 56, 57
    sRP = 60
    kernel_head(a, name)
    a.e(["s_cmp_ge_u32 s2, 256", "s_cbranch_scc1 g1_exit",
         "s_load_dwordx2 s[6:7], s[0:1], 8", "s_load_dwordx4 s[8:11], s[0:1], 32", "s_load_dwordx2 s[12:13], s[0:1], 72",
         "s_load_dwordx2 s[14:15], s[0:1], 16", "s_load_dwordx2 s[16:17], s[0:1], 48",
         "v_lshrrev_b32 v12, 6, v0", "v_and_b32 v0, 63, v0",
         f"v_readfirstlane_b32 s{sWave}, v12",
         f"s_and_b32 s{sT0}, s2, 7", f"s_lshr_b32 s{sT1}, s2, 3",
         f"s_lshl_b32 s{sNt}, s{sT0}, 2", f"s_and_b32 s{sT0}, s{sT1}, 3", f"s_add_u32 s{sNt}, s{sNt}, s{sT0}",
         f"s_lshr_b32 s{sMt}, s{sT1}, 2",
         f"s_lshr_b32 s{sP}, s{sNt}, 1",
         f"s_xor_b32 s{sIsA}, s{sNt}, s{sP}", f"s_and_b32 s{sIsA}, s{sIsA}, 1",
         f"s_mul_i32 s{sF0}, s{sP}, 224",
         f"s_lshl_b32 s{sT0}, s{sIsA}, 5", f"s_add_u32 s{sT0}, s{sT0}, 96",
         f"s_bitcmp1_b32 s{sNt}, 0", f"s_cselect_b32 s{sT0}, s{sT0}, 0", f"s_add_u32 s{sF0}, s{sF0}, s{sT0}",
         f"s_and_b32 s{sMw}, s{sWave}, 3", f"s_lshr_b32 s{sNw}, s{sWave}, 2",
         f"s_lshl_b32 s{sT0}, s{sIsA}, 1", f"s_add_u32 s{sT0}, s{sT0}, s{sNw}"])
    for v in range(1, 4):
        a.e([f"s_cmp_eq_u32 s{sT0}, {v}", f"s_cbranch_scc1 g1_v{v}"])

    def variant(isA, nw):
        V = isA * 2 + nw
        if isA: S0, SG, RO_G, RO_U = 256, 192, 8192, 14336
        else: S0, SG, RO_G, RO_U = 128, 256, 4096, 12288
        if isA: qk = list(range(6)) if nw == 0 else [6, 7]; quads = [0] if nw == 0 else [1, 2]
        else: qk = [2 * nw, 2 * nw + 1]; quads = [2 * nw, 2 * nw + 1]
        blocks = [('q', i) for i in qk]
        for q in quads: blocks += [('g', 2 * q), ('g', 2 * q + 1), ('u', 2 * q), ('u', 2 * q + 1)]
        stride = [S0 if k == 'q' else SG for k, _ in blocks]
        a.lab(f"g1_v{V}")
        def slot_decode(dst, S, base_s, gstride, kind):
            o = [f"v_add_u32 v12, {base_s}, v0"]
            if S == 192:
                o += ["v_mul_u32_u24 v13, 43691, v12", "v_lshrrev_b32 v13, 19, v13", "v_mul_u32_u24 v14, 12, v13", "v_sub_u32 v14, v12, v14",
                      "v_bfe_u32 v15, v13, 3, 1", "v_lshlrev_b32 v15, 1, v15", "v_xor_b32 v14, v14, v15"]
            elif S == 256:
                o += ["v_lshrrev_b32 v13, 4, v12", "v_and_b32 v14, 15, v12", "v_and_b32 v15, 3, v13", "v_lshlrev_b32 v15, 1, v15", "v_xor_b32 v14, v14, v15",
                      "v_and_b32 v15, 8, v13", "v_xor_b32 v14, v14, v15"]
            else:
                o += ["v_lshrrev_b32 v13, 3, v12", "v_and_b32 v14, 7, v12", "v_and_b32 v15, 2, v13", "v_xor_b32 v14, v14, v15",
                      "v_bfe_u32 v15, v13, 3, 1", "v_lshlrev_b32 v15, 2, v15", "v_xor_b32 v14, v14, v15"]
            o += [f"v_mul_u32_u24 v13, {gstride}, v13"]
            if kind == 'qk':
                o += ["v_lshrrev_b32 v15, 3, v14", "v_lshl_add_u32 v13, v15, 11, v13", "v_and_b32 v14, 7, v14"]
            o += [f"v_lshl_add_u32 v{dst}, v14, 4, v13"]
            return o
        if nw == 0:
            a.e([f"s_lshl_b32 s{sT0}, s{sMw}, 6", f"s_lshl_b32 s{sDst}, s{sMw}, 10"])
            if isA: plan = [('q', 0), ('q', 256), ('g', 0), ('gu', None), ('u', 128)]
            else: plan = [('q', 0), ('g', 0), ('g', 256), ('u', 0), ('u', 256)]
            for i, (k, sb) in enumerate(plan):
                if k == 'gu':
                    a.e([f"s_cmp_lt_u32 s{sMw}, 2", f"s_cselect_b32 s{sT1}, 384, 0", f"s_add_u32 s{sT1}, s{sT1}, s{sT0}", f"s_sub_u32 s{sT1}, s{sT1}, 128"])
                    a.e(slot_decode(VD + i, SG, f"s{sT1}", 7168, 'g'))
                else:
                    a.e([f"s_add_u32 s{sT1}, s{sT0}, {sb}"])
                    if k == 'q': a.e(slot_decode(VD + i, S0, f"s{sT1}", 6144, 'qk' if isA else 'v'))
                    else: a.e(slot_decode(VD + i, SG, f"s{sT1}", 7168, 'g'))
            srds = [{'q': sWQ, 'g': sWG, 'u': sWU, 'gu': sGU}[k] for k, _ in plan]
            soffs = [sQ if k == 'q' else sG for k, _ in plan]
            a.e([f"s_lshl_b32 s{sQ}, s{sP}, 7"] + ([] if isA else [f"s_add_u32 s{sQ}, s{sQ}, 4096"]) + [f"s_lshl_b32 s{sG}, s{sF0}, 1"])
            a.e("s_waitcnt lgkmcnt(0)")
            ts(a, 0)
            srd(a, sWQ, 6, 1024 * 6144)
            srd(a, sWG, 8, 1024 * 7168)
            srd(a, sWU, 10, 1024 * 7168)
            if isA:
                a.e([f"s_cmp_lt_u32 s{sMw}, 2", f"s_cselect_b32 s{sGU}, s{sWG}, s{sWU}", f"s_cselect_b32 s{sGU+1}, s{sWG+1}, s{sWU+1}",
                     f"s_mov_b32 s{sGU+2}, {1024*7168}", f"s_mov_b32 s{sGU+3}, 0x00020000"])
            def dma(sl):
                o = [[f"s_add_u32 m0, s{sDst}, {sl*G1_WST + 4096*i}", "s_nop 0", f"buffer_load_dwordx4 v{VD+i}, {sr(srds[i],4)}, s{soffs[i]} offen lds"] for i in range(5)]
                o[-1] = o[-1] + [f"s_add_u32 s{sQ}, s{sQ}, {32*6144}", f"s_add_u32 s{sG}, s{sG}, {32*7168}"]
                return o
            ND = 5
            for st in range(RAMP): a.e(dma(st))
            srd(a, sWS, 12, WSN)
            srd(a, sRP, 14, 1024 * 2048)
        else:
            a.e([f"v_lshlrev_b32 v{VD}, 4, v0"] + [f"v_add_u32 v{VD+i}, {i*(32768-1024)}, v{VD}" for i in range(1, 4)])
            a.e([f"s_lshl_b32 s{sXs}, s{sMt}, 19", f"s_lshl_b32 s{sT0}, s{sMw}, 17", f"s_add_u32 s{sXs}, s{sXs}, s{sT0}", f"s_add_u32 s{sXs}, s{sXs}, {WS_XN}",
                 f"s_lshl_b32 s{sDst}, s{sMw}, 12", f"s_add_u32 s{sDst}, s{sDst}, {G1_XR}", "s_waitcnt lgkmcnt(0)"])
            ts(a, 0)
            srd(a, sWS, 12, WSN)
            def dma(sl):
                o = [[f"buffer_load_dwordx4 v{VD+i}, {sr(sWS,4)}, s{sXs} offen offset:{1024*i} lds"] for i in range(4)]
                o[0] = [f"s_add_u32 m0, s{sDst}, {sl*G1_XST}", "s_nop 0"] + o[0]
                o[-1] = o[-1] + [f"s_add_u32 s{sXs}, s{sXs}, 1024"]
                return o
            ND = 4
            for st in range(RAMP): a.e(dma(st))
            srd(a, sRP, 16, 3584 * 2048)
            if PF:
                r0 = PF0
                parts = [(6, 1024 * 6144, 76, r0 * 6144), (8, 1024 * 7168, 90, r0 * 7168), (10, 1024 * 7168, 90, r0 * 7168)]
                if 'p' in AB or not REPACK: parts = [(6, 1024 * 6144, 62, r0 * 6144), (8, 1024 * 7168, 72, r0 * 7168), (10, 1024 * 7168, 72, r0 * 7168), (16, 3584 * 2048, 39, 0), (14, 1024 * 2048, 11, 0)]
                srd(a, sWU, 6, 1024 * 6144)
                a.e([f"s_mov_b32 s{sQ}, {parts[0][3]}", f"s_mov_b32 s{sG}, {parts[0][2] * 8192}"])
                lo = parts[0][2]
                for ptr, sz, n, off in parts[1:]:
                    srd(a, sWG, ptr, sz)
                    a.e([f"s_cmp_ge_u32 s2, {lo}", f"s_cselect_b32 s{sWU}, s{sWG}, s{sWU}", f"s_cselect_b32 s{sWU+1}, s{sWG+1}, s{sWU+1}", f"s_cselect_b32 s{sWU+2}, s{sWG+2}, s{sWU+2}",
                         f"s_cselect_b32 s{sQ}, {(off - lo * 8192) & 0xffffffff}, s{sQ}", f"s_cselect_b32 s{sG}, {n * 8192}, s{sG}"])
                    lo += n
                assert lo == 256
                a.e([f"s_lshl_b32 s{sT0}, s2, 2", f"s_add_u32 s{sT0}, s{sT0}, s{sMw}", f"s_lshl_b32 s{sT0}, s{sT0}, 11", f"s_add_u32 s{sQ}, s{sQ}, s{sT0}",
                     f"v_lshlrev_b32 v{VD+4}, 5, v0"])
                pf = [f"buffer_load_dword v95, v{VD+4}, {sr(sWU,4)}, s{sQ} offen", f"s_add_u32 s{sQ}, s{sQ}, s{sG}"]
        a.e(["v_bfe_u32 v12, v0, 2, 2", "v_lshrrev_b32 v13, 4, v0", "v_lshl_add_u32 v14, v13, 3, v12", "v_and_b32 v15, 3, v0", "v_lshlrev_b32 v15, 3, v15",
             "v_and_b32 v13, 1, v13"])
        for S in sorted(set(stride)):
            if S == 256: a.e(["v_lshl_add_u32 v93, v13, 2, v12"])
            elif S == 192: a.e(["v_mov_b32 v93, v13"])
            else: a.e(["v_lshrrev_b32 v93, 1, v12", "v_lshl_add_u32 v93, v13, 1, v93"])
            a.e(["v_lshlrev_b32 v93, 5, v93", f"v_mul_u32_u24 v94, {S}, v14", "v_add_u32 v94, v94, v15"])
            for b, (k, idx) in enumerate(blocks):
                if stride[b] != S: continue
                ro = {'q': 0, 'g': RO_G, 'u': RO_U}[k]
                a.e([f"v_xor_b32 v95, {32*idx}, v93", f"v_add_u32 v95, {ro}, v95", f"v_add_u32 v{VA+b}, v94, v95"])
        a.e([f"s_lshl_b32 s{sT0}, s{sMw}, 12", f"s_add_u32 s{sT0}, s{sT0}, {G1_XR}", f"v_lshlrev_b32 v{VB}, 4, v0", f"v_add_u32 v{VB}, s{sT0}, v{VB}"])
        def aread(b, sl):
            return [f"ds_read_b64_tr_b16 {vr(AF(b)+2*h,2)}, v{VA+b} offset:{sl*G1_WST + 4*h*stride[b]}" for h in range(2)]
        def bread(p, sl):
            return [f"ds_read_b128 {vr(BF(p,tb),4)}, v{VB} offset:{sl*G1_XST + 1024*tb}" for tb in range(4)]
        def mm(b, tb, p, c=None):
            if blocks[b][0] == 'q' and not isA: return mfma16(ACC(b, tb), BF(p, tb), AF(b), c)
            return mfma16(ACC(b, tb), AF(b), BF(p, tb), c)
        a.e(["v_lshlrev_b32 v94, 4, v0", "v_lshrrev_b32 v12, 3, v0", "v_lshlrev_b32 v12, 12, v12", "v_and_b32 v13, 7, v0",
             f"s_and_b32 s{sT0}, s{sMw}, 2", f"s_lshl_b32 s{sT0}, s{sT0}, 1", f"v_xor_b32 v13, s{sT0}, v13", "v_lshl_add_u32 v93, v13, 4, v12",
             f"s_lshr_b32 s{sT0}, s2, 1", f"s_lshl_b32 s{sT0}, s{sT0}, 2", f"s_add_u32 s{sT0}, s{sT0}, s{sMw}",
             f"s_and_b32 s{sT1}, s2, 1", f"s_lshl_b32 s{sRs}, s{sT0}, 1", f"s_add_u32 s{sRs}, s{sRs}, s{sT1}", f"s_lshl_b32 s{sRs}, s{sRs}, 10",
             f"s_and_b32 s{sT0}, s{sT0}, 31", f"s_lshl_b32 s{sRd}, s{sT0}, 7", f"s_lshl_b32 s{sT1}, s{sT1}, 15", f"s_add_u32 s{sRd}, s{sRd}, s{sT1}",
             f"s_lshr_b32 s{sT0}, s2, 4", f"s_lshl_b32 s{sT0}, s{sT0}, 16", f"s_add_u32 s{sRd}, s{sRd}, s{sT0}", f"s_add_u32 s{sRd}, s{sRd}, {WS_WP + (0 if nw else 7 << 20)}",
             f"s_lshr_b32 s{sT0}, s2, 1", f"s_mul_i32 s{sT2}, s{sT0}, {ACT_TB}", f"s_lshr_b32 s{sT1}, s{sT1}, 1", f"s_add_u32 s{sT2}, s{sT2}, s{sT1}",
             f"s_lshl_b32 s{sT1}, s{sWave}, 11", f"s_add_u32 s{sT2}, s{sT2}, s{sT1}", f"s_add_u32 s{sT2}, s{sT2}, {WS_ACT + 112 * 1024}"] +
            [f"v_mov_b32 v{12+i}, -1" for i in range(4)])
        usepf = PF and nw == 1
        def ops(s):
            o = []
            if s == 0:
                for k in range(RAMP + 1, 4): o += [(('d', k), g) for g in dma(k)]
            if s + 4 < 32 and 'm' not in G1X:
                o += [(('d', s + 4), g) for g in dma(s & 3)]
                if usepf: o += [('pf', pf)]
            if s == ZS and 'z' not in AB: o += [('z', [f"buffer_store_dwordx4 v[12:15], v94, {sr(sWS,4)}, s{sT2} offen offset:{1024*i} sc1"]) for i in range(2)]
            if s % 4 == RPS and REPACK:
                if s >= 4 and 's' not in AB: o += [('rs', [f"buffer_store_dwordx4 v[12:15], v93, {sr(sWS,4)}, s{sRd} offen{RST}", f"s_add_u32 s{sRd}, s{sRd}, {1 << 20}"])]
                if s < 28 and 'l' not in AB: o += [('rl', [f"buffer_load_dwordx4 v[12:15], v94, {sr(sRP,4)}, s{sRs} offen", f"s_add_u32 s{sRs}, s{sRs}, {1 << 20}"])]
            return o
        seq = [('d', k) for k in range(min(RAMP + 1, 4)) for _ in range(ND)]
        cnt = []
        for s in range(31):
            idx = [i for i, t in enumerate(seq) if t == ('d', s + 1)]
            cnt.append(len(seq) - 1 - idx[-1] if idx else 0)
            seq += [t for t, _ in ops(s)]
        for s in range(4, 8): cnt[s] = min(cnt[s:28:4])
        a.e([f"s_waitcnt vmcnt({(RAMP - 1) * ND})", "s_barrier"])
        ts(a, 1)
        a.e(bread(0, 0))
        for b in range(10): a.e(aread(b, 0))
        if RAMP < 4: a.e(dma(RAMP))
        def stage(s):
            sl = s & 3; reads = s < 31
            p = sl & 1; nx = (sl + 1) & 3
            c = "0" if s == 0 else None
            a.e("s_waitcnt lgkmcnt(15)")
            a.e([mm(0, tb, p, c) for tb in range(4)])
            if reads: a.e([f"s_waitcnt vmcnt({cnt[s]}) lgkmcnt(0)"] + ([] if 'b' in G1X else ["s_barrier"]))
            else: a.e("s_waitcnt lgkmcnt(0)")
            dm = [g for _, g in ops(s)]
            pos = [(b, 2) for b in range(3, 10)] if len(dm) <= 7 else [(b, k) for b in range(3, 10) for k in (2, 3)] if len(dm) <= 14 else [(b, k) for b in range(1, 10) for k in (1, 3)]
            assert len(dm) <= len(pos)
            br = bread(1 - p, nx) if reads and 'r' not in G1X else []
            for b in range(1, 10):
                ar = aread(b - 1, nx) if reads and 'r' not in G1X else [[], []]
                f = [[ar[0]], [ar[1]], [], []]
                if b <= 2 and br: f[2] = [br[2*(b-1)]]; f[3] = [br[2*(b-1)+1]]
                for (pb, k), g in zip(pos, dm):
                    if pb == b: f[k] = f[k] + g
                for tb in range(4):
                    a.e(f[tb]); a.e(mm(b, tb, p, c))
            if reads and 'r' not in G1X: a.e(aread(9, nx))
        for s in range(4): stage(s)
        a.e(f"s_mov_b32 s{sCnt}, 6")
        a.raw(".p2align 6")
        a.lab(f"g1_loop{V}")
        for s in range(4, 8): stage(s)
        a.e([f"s_sub_u32 s{sCnt}, s{sCnt}, 1", f"s_cmp_lg_u32 s{sCnt}, 0", f"s_cbranch_scc1 g1_loop{V}"])
        for s in range(28, 32): stage(s)
        ts(a, 2)
        a.e(["v_lshlrev_b32 v1, 4, v0",
             "v_and_b32 v12, 0x33, v0", "v_lshlrev_b32 v12, 4, v12", "v_bfe_u32 v13, v0, 2, 1", "v_lshl_add_u32 v12, v13, 7, v12", "v_bfe_u32 v13, v0, 3, 1", "v_lshl_add_u32 v3, v13, 10, v12",
             f"s_mov_b32 s{sT2}, {hex(f2u(-LOG2E))}", f"s_mov_b32 s{sCnt}, {hex(f2u(LOG2E * 32 ** -0.5))}",
             f"s_lshl_b32 s{sT0}, s{sMt}, 3", f"s_lshl_b32 s{sT1}, s{sMw}, 1", f"s_add_u32 s{sT0}, s{sT0}, s{sT1}",
             f"s_lshl_b32 s{sQ}, s{sT0}, 11", f"s_lshl_b32 s{sT1}, s{sP}, 18", f"s_add_u32 s{sQ}, s{sQ}, s{sT1}",
             f"s_mul_i32 s{sG}, s{sT0}, {2*ACT_TB}", f"s_lshl_b32 s{sT1}, s{sF0}, 5", f"s_add_u32 s{sG}, s{sG}, s{sT1}",
             f"s_add_u32 s{sG}, s{sG}, {WS_ACT}"])
        if V == 0:
            a.e([f"s_or_b32 s{sT0}, s2, s{sWave}", f"s_cbranch_scc1 g1_noz"] + [f"v_mov_b32 v{4+i}, 0" for i in range(4)] +
                [f"s_mov_b32 s{sT0}, {WS_FLAG}", f"buffer_store_dwordx4 v[4:7], v1, {sr(sWS,4)}, s{sT0} offen"])
            a.lab("g1_noz")
        tmp = [16 + 4 * i for i in range(18)]
        ti = [0]
        def T():
            t = tmp[ti[0] % len(tmp)]; ti[0] += 1; return t
        for hp in range(len(qk) // 2):
            b0 = 2 * hp; idx = qk[b0] >> 1
            if isA:
                isq = idx < 2
                a.e(f"s_add_u32 s{sT0}, s{sQ}, {(WS_Q if isq else WS_K) + (idx & 1) * 131072}")
                for tb in range(4):
                    t = T()
                    for u in range(2):
                        D = ACC(b0 + u, tb)
                        if isq: a.e([f"v_mul_f32 v{D+j}, s{sCnt}, v{D+j}" for j in range(4)])
                        a.e([f"v_cvt_pk_bf16_f32 v{t+2*u+j}, v{D+2*j}, v{D+2*j+1}" for j in range(2)])
                    off = (tb >> 1) * 2048 + (tb & 1) * (1024 if isq else 64)
                    a.e(f"buffer_store_dwordx4 {vr(t,4)}, v{1 if isq else 3}, {sr(sWS,4)}, s{sT0} offen offset:{off}{ST}")
            else:
                a.e(f"s_add_u32 s{sT0}, s{sQ}, {WS_V + (idx & 1) * 131072}")
                for db in range(2):
                    for i in range(2):
                        t = T()
                        for u in range(2):
                            D = ACC(b0 + db, 2 * i + u)
                            a.e([f"v_cvt_pk_bf16_f32 v{t+2*u+j}, v{D+2*j}, v{D+2*j+1}" for j in range(2)])
                        a.e(f"buffer_store_dwordx4 {vr(t,4)}, v1, {sr(sWS,4)}, s{sT0} offen offset:{i*2048 + db*1024}{ST}")
        for qi, q in enumerate(quads):
            b0 = len(qk) + 4 * qi
            for tb in range(4):
                t = T()
                G = [ACC(b0 + u, tb) + j for u in range(2) for j in range(4)]
                U = [ACC(b0 + 2 + u, tb) + j for u in range(2) for j in range(4)]
                a.e([f"v_mul_f32 v{g}, s{sT2}, v{g}" for g in G])
                a.e([f"v_exp_f32 v{g}, v{g}" for g in G])
                a.e([f"v_add_f32 v{g}, 1.0, v{g}" for g in G])
                a.e([f"v_rcp_f32 v{g}, v{g}" for g in G])
                a.e([f"v_mul_f32 v{g}, v{g}, v{u}" for g, u in zip(G, U)])
                a.e([f"v_cvt_pk_bf16_f32 v{t+j}, v{G[2*j]}, v{G[2*j+1]}" for j in range(4)])
                a.e(f"s_add_u32 s{sT0}, s{sG}, {tb*ACT_TB + q*1024}")
                a.e(f"buffer_store_dwordx4 {vr(t,4)}, v1, {sr(sWS,4)}, s{sT0} offen{ST}")
        ts(a, 3)
        if PROF: a.e(["s_waitcnt vmcnt(0)", f"s_mov_b32 s{sWS+2}, {WS_BYTES}"])
        ts(a, 4)
        ts_dump(a, 5, sWS, sWave, 0, sT0)
        a.e("s_endpgm")

    for isA in (0, 1):
        for nw in (0, 1): variant(isA, nw)
    a.lab("g1_exit")
    a.e("s_endpgm")
    return kernel_desc(name, 256), f"; @launch kernel={name} grid=(256,1,1) block=(512,1,1) lds={G1_LDS}"
```

```python
import struct
LOG2E = 1.4426950408889634
import struct
def f2u(x): return struct.unpack('<I', struct.pack('<f', x))[0]

WS_Q = 0
WS_K = 4 << 20
WS_V = 8 << 20
WS_ACT = 12 << 20
ACT_TB = 144 * 1024
WS_XN = 32 << 20
WS_FLAG = 40 << 20
WS_WP = 48 << 20
WS_BYTES = 268435456

class Asm:
    def __init__(s): s.L = []
    def e(s, x):
        if isinstance(x, (list, tuple)):
            for y in x: s.e(y)
        else: s.L.append(x.replace(", ", ","))
    def lab(s, x): s.L.append(x + ":")
    def raw(s, x): s.L.append(x)
    def text(s): return "\n".join(s.L) + "\n"

def vr(a, n=1): return f"v{a}" if n == 1 else f"v[{a}:{a+n-1}]"
def sr(a, n=1): return f"s{a}" if n == 1 else f"s[{a}:{a+n-1}]"
def mfma32(d, a, b, c=None):
    cs = vr(d, 16) if c is None else (c if isinstance(c, str) else vr(c, 16))
    return f"v_mfma_f32_32x32x16_bf16 {vr(d,16)}, {vr(a,4)}, {vr(b,4)}, {cs}"
def mfma16(d, a, b, c=None):
    cs = vr(d, 4) if c is None else (c if isinstance(c, str) else vr(c, 4))
    return f"v_mfma_f32_16x16x32_bf16 {vr(d,4)}, {vr(a,4)}, {vr(b,4)}, {cs}"

def weave(mf, fill, first=0):
    n = len(mf) - first
    out = []
    k = 0
    for i, m in enumerate(mf):
        out.append(m)
        if i >= first:
            tgt = (len(fill) * (i - first + 1) + n - 1) // n
            while k < tgt:
                out.append(fill[k]); k += 1
    return out

def srd(a, R, lo, nbytes):
    a.e([f"s_mov_b32 s{R}, s{lo}", f"s_and_b32 s{R+1}, s{lo+1}, 0xffff", f"s_mov_b32 s{R+2}, {nbytes}", f"s_mov_b32 s{R+3}, 0x00020000"])

def kernel_head(a, name):
    a.raw(f".globl {name}\n.p2align 8\n.type {name},@function")
    a.lab(name)

def kernel_desc(name, nv, ns=102):
    return f""".amdhsa_kernel {name}
  .amdhsa_next_free_vgpr {nv}
  .amdhsa_next_free_sgpr {ns}
  .amdhsa_accum_offset {nv}
  .amdhsa_group_segment_fixed_size 0
  .amdhsa_kernarg_size 80
  .amdhsa_user_sgpr_count 2
  .amdhsa_user_sgpr_kernarg_segment_ptr 1
  .amdhsa_system_sgpr_workgroup_id_x 1
.end_amdhsa_kernel
"""


import os
PROF = os.environ.get('PROF', '')
REPACK = os.environ.get('REPACK', '0') == '1'
def ts(a, i):
    if PROF == 'S':
        a.e([f"s_memrealtime s[{90}:{91}]", "s_waitcnt lgkmcnt(0)", f"s_mov_b32 s{[70,71,80,81,82,83][i]}, s90"])
    elif PROF: a.e([f"s_memtime s[{70+4*i}:{71+4*i}]", f"s_memrealtime s[{72+4*i}:{73+4*i}]"])
def ts_dump(a, n, sWS, sWave, kidx, sT):
    if not PROF: return
    a.e(["s_waitcnt lgkmcnt(0)", f"s_lshl_b32 s{sT}, s2, 3", f"s_add_u32 s{sT}, s{sT}, s{sWave}", f"s_lshl_b32 s{sT}, s{sT}, 6",
         f"s_add_u32 s{sT}, s{sT}, {(128 << 20) + kidx * (1 << 20)}", "v_mov_b32 v0, 0"])
    if PROF == 'S':
        for i in range(8):
            a.e([f"v_mov_b32 v2, s{70+2*i}", f"v_mov_b32 v3, s{71+2*i}", f"buffer_store_dwordx2 v[2:3], v0, s[{sWS}:{sWS+3}], s{sT} offen offset:{8*i}", "s_nop 1"])
        return
    for i in range(n):
        a.e([f"v_mov_b32 v2, s{70+4*i}", f"v_mov_b32 v3, s{72+4*i}", f"buffer_store_dwordx2 v[2:3], v0, s[{sWS}:{sWS+3}], s{sT} offen offset:{8*i}", "s_nop 1"])

def tsl0(a):
    if PROF == 'S': a.e("s_memrealtime s[90:91]")
def tsl1(a, sCnt, base=79):
    if PROF == 'S': a.e([f"s_sub_u32 m0, {base - 70}, s{sCnt}", "s_nop 0", "s_movreld_b32 s70, s90"])
```

```python
from common import *
import os
G1X = os.environ.get('G1X', '')
ST = os.environ.get('ST', ' sc1')

G1_WST = 20480
G1_XR = 4 * G1_WST
G1_XST = 16384
G1_PF = G1_XR + 4 * G1_XST
G1_LDS = G1_PF
PF = os.environ.get('G1PF', '1') == '1'
PF0 = int(os.environ.get('G1PF0', '128'))
RAMP = int(os.environ.get('G1RAMP', '2'))
RPS = int(os.environ.get('G1RPS', '1'))
WSN = WS_WP + (9 << 20)
ZS = int(os.environ.get('G1ZS', '1' if REPACK else '28'))
AB = os.environ.get('G1AB', '')
RST = os.environ.get('RST', ' sc1')
ROT = int(os.environ.get('G1ROT', '0'))
PFS = int(os.environ.get('G1PFS', '0'))

def gen_g1(a):
    name = "g1_kernel"
    ACC = lambda b, tb: 96 + (b * 4 + tb) * 4
    AF = lambda b: 16 + 4 * b
    BF = lambda p, tb: 56 + 16 * p + 4 * tb
    VA = 1; VB = 11; VD = 88
    sWQ, sWG, sWU, sGU, sWS = 20, 24, 28, 32, 36
    sWave, sMw, sNw, sMt, sNt, sP, sIsA, sF0 = 40, 41, 42, 43, 44, 45, 46, 47
    sQ, sG, sT0, sT1, sT2, sCnt, sDst, sXs, sRs, sRd = 48, 49, 50, 51, 52, 53, 54, 55, 56, 57
    sRP = 60
    sGrp, sB0, sB1 = 64, 65, 66
    def nextgrp(first, regs):
        if ROT == 1: o = [f"s_add_u32 s{sGrp}, s{sGrp}, 1", f"s_and_b32 s{sGrp}, s{sGrp}, 7"]
        else: o = [f"s_mov_b32 s{sGrp}, 0" if first else f"s_add_u32 s{sGrp}, s{sGrp}, 1", f"s_cmp_eq_u32 s{sGrp}, s{sMt}", f"s_addc_u32 s{sGrp}, s{sGrp}, 0"]
        return o + grpoff(regs)
    def grpoff(regs):
        o = []
        for d, b, st in regs: o += [f"s_mul_i32 s{d}, s{sGrp}, {st}", f"s_add_u32 s{d}, s{d}, s{b}"]
        return o
    kernel_head(a, name)
    a.e(["s_cmp_ge_u32 s2, 256", "s_cbranch_scc1 g1_exit",
         "s_load_dwordx2 s[6:7], s[0:1], 8", "s_load_dwordx4 s[8:11], s[0:1], 32", "s_load_dwordx2 s[12:13], s[0:1], 72",
         "s_load_dwordx2 s[14:15], s[0:1], 16", "s_load_dwordx2 s[16:17], s[0:1], 48",
         "v_lshrrev_b32 v12, 6, v0", "v_and_b32 v0, 63, v0",
         f"v_readfirstlane_b32 s{sWave}, v12",
         f"s_and_b32 s{sT0}, s2, 7", f"s_lshr_b32 s{sT1}, s2, 3",
         f"s_lshl_b32 s{sNt}, s{sT0}, 2", f"s_and_b32 s{sT0}, s{sT1}, 3", f"s_add_u32 s{sNt}, s{sNt}, s{sT0}",
         f"s_lshr_b32 s{sMt}, s{sT1}, 2",
         f"s_lshr_b32 s{sP}, s{sNt}, 1",
         f"s_xor_b32 s{sIsA}, s{sNt}, s{sP}", f"s_and_b32 s{sIsA}, s{sIsA}, 1",
         f"s_mul_i32 s{sF0}, s{sP}, 224",
         f"s_lshl_b32 s{sT0}, s{sIsA}, 5", f"s_add_u32 s{sT0}, s{sT0}, 96",
         f"s_bitcmp1_b32 s{sNt}, 0", f"s_cselect_b32 s{sT0}, s{sT0}, 0", f"s_add_u32 s{sF0}, s{sF0}, s{sT0}",
         f"s_and_b32 s{sMw}, s{sWave}, 3", f"s_lshr_b32 s{sNw}, s{sWave}, 2",
         f"s_lshl_b32 s{sT0}, s{sIsA}, 1", f"s_add_u32 s{sT0}, s{sT0}, s{sNw}"])
    for v in range(1, 4):
        a.e([f"s_cmp_eq_u32 s{sT0}, {v}", f"s_cbranch_scc1 g1_v{v}"])

    def variant(isA, nw):
        V = isA * 2 + nw
        if isA: S0, SG, RO_G, RO_U = 256, 192, 8192, 14336
        else: S0, SG, RO_G, RO_U = 128, 256, 4096, 12288
        if isA: qk = list(range(6)) if nw == 0 else [6, 7]; quads = [0] if nw == 0 else [1, 2]
        else: qk = [2 * nw, 2 * nw + 1]; quads = [2 * nw, 2 * nw + 1]
        blocks = [('q', i) for i in qk]
        for q in quads: blocks += [('g', 2 * q), ('g', 2 * q + 1), ('u', 2 * q), ('u', 2 * q + 1)]
        stride = [S0 if k == 'q' else SG for k, _ in blocks]
        a.lab(f"g1_v{V}")
        def slot_decode(dst, S, base_s, gstride, kind):
            o = [f"v_add_u32 v12, {base_s}, v0"]
            if S == 192:
                o += ["v_mul_u32_u24 v13, 43691, v12", "v_lshrrev_b32 v13, 19, v13", "v_mul_u32_u24 v14, 12, v13", "v_sub_u32 v14, v12, v14",
                      "v_bfe_u32 v15, v13, 3, 1", "v_lshlrev_b32 v15, 1, v15", "v_xor_b32 v14, v14, v15"]
            elif S == 256:
                o += ["v_lshrrev_b32 v13, 4, v12", "v_and_b32 v14, 15, v12", "v_and_b32 v15, 3, v13", "v_lshlrev_b32 v15, 1, v15", "v_xor_b32 v14, v14, v15",
                      "v_and_b32 v15, 8, v13", "v_xor_b32 v14, v14, v15"]
            else:
                o += ["v_lshrrev_b32 v13, 3, v12", "v_and_b32 v14, 7, v12", "v_and_b32 v15, 2, v13", "v_xor_b32 v14, v14, v15",
                      "v_bfe_u32 v15, v13, 3, 1", "v_lshlrev_b32 v15, 2, v15", "v_xor_b32 v14, v14, v15"]
            o += [f"v_mul_u32_u24 v13, {gstride}, v13"]
            if kind == 'qk':
                o += ["v_lshrrev_b32 v15, 3, v14", "v_lshl_add_u32 v13, v15, 11, v13", "v_and_b32 v14, 7, v14"]
            o += [f"v_lshl_add_u32 v{dst}, v14, 4, v13"]
            return o
        if nw == 0:
            a.e([f"s_lshl_b32 s{sT0}, s{sMw}, 6", f"s_lshl_b32 s{sDst}, s{sMw}, 10"])
            if isA: plan = [('q', 0), ('q', 256), ('g', 0), ('gu', None), ('u', 128)]
            else: plan = [('q', 0), ('g', 0), ('g', 256), ('u', 0), ('u', 256)]
            for i, (k, sb) in enumerate(plan):
                if k == 'gu':
                    a.e([f"s_cmp_lt_u32 s{sMw}, 2", f"s_cselect_b32 s{sT1}, 384, 0", f"s_add_u32 s{sT1}, s{sT1}, s{sT0}", f"s_sub_u32 s{sT1}, s{sT1}, 128"])
                    a.e(slot_decode(VD + i, SG, f"s{sT1}", 7168, 'g'))
                else:
                    a.e([f"s_add_u32 s{sT1}, s{sT0}, {sb}"])
                    if k == 'q': a.e(slot_decode(VD + i, S0, f"s{sT1}", 6144, 'qk' if isA else 'v'))
                    else: a.e(slot_decode(VD + i, SG, f"s{sT1}", 7168, 'g'))
            srds = [{'q': sWQ, 'g': sWG, 'u': sWU, 'gu': sGU}[k] for k, _ in plan]
            soffs = [sQ if k == 'q' else sG for k, _ in plan]
            a.e([f"s_lshl_b32 s{sQ}, s{sP}, 7"] + ([] if isA else [f"s_add_u32 s{sQ}, s{sQ}, 4096"]) + [f"s_lshl_b32 s{sG}, s{sF0}, 1"])
            a.e("s_waitcnt lgkmcnt(0)")
            ts(a, 0)
            srd(a, sWQ, 6, 1024 * 6144)
            srd(a, sWG, 8, 1024 * 7168)
            srd(a, sWU, 10, 1024 * 7168)
            if isA:
                a.e([f"s_cmp_lt_u32 s{sMw}, 2", f"s_cselect_b32 s{sGU}, s{sWG}, s{sWU}", f"s_cselect_b32 s{sGU+1}, s{sWG+1}, s{sWU+1}",
                     f"s_mov_b32 s{sGU+2}, {1024*7168}", f"s_mov_b32 s{sGU+3}, 0x00020000"])
            regs = [(sQ, sB0, 128 * 6144), (sG, sB1, 128 * 7168)]
            if ROT: a.e([f"s_mov_b32 s{sB0}, s{sQ}", f"s_mov_b32 s{sB1}, s{sG}", f"s_mov_b32 s{sGrp}, s{sMt}"] + grpoff(regs))
            def dma(d):
                sl = d & 3
                o = [[f"s_add_u32 m0, s{sDst}, {sl*G1_WST + 4096*i}", "s_nop 0", f"buffer_load_dwordx4 v{VD+i}, {sr(srds[i],4)}, s{soffs[i]} offen lds"] for i in range(5)]
                if ROT and sl == 3: o[-1] = o[-1] + nextgrp(d == 3, regs)
                else: o[-1] = o[-1] + [f"s_add_u32 s{sQ}, s{sQ}, {32*6144}", f"s_add_u32 s{sG}, s{sG}, {32*7168}"]
                return o
            ND = 5
            for st in range(RAMP): a.e(dma(st))
            srd(a, sWS, 12, WSN)
            srd(a, sRP, 14, 1024 * 2048)
        else:
            a.e([f"v_lshlrev_b32 v{VD}, 4, v0"] + [f"v_add_u32 v{VD+i}, {i*(32768-1024)}, v{VD}" for i in range(1, 4)])
            a.e([f"s_lshl_b32 s{sXs}, s{sMt}, 19", f"s_lshl_b32 s{sT0}, s{sMw}, 17", f"s_add_u32 s{sXs}, s{sXs}, s{sT0}", f"s_add_u32 s{sXs}, s{sXs}, {WS_XN}",
                 f"s_lshl_b32 s{sDst}, s{sMw}, 12", f"s_add_u32 s{sDst}, s{sDst}, {G1_XR}", "s_waitcnt lgkmcnt(0)"])
            ts(a, 0)
            srd(a, sWS, 12, WSN)
            regs = [(sXs, sB0, 4096)]
            if ROT: a.e([f"s_mov_b32 s{sB0}, s{sXs}", f"s_mov_b32 s{sGrp}, s{sMt}"] + grpoff(regs))
            def dma(d):
                sl = d & 3
                o = [[f"buffer_load_dwordx4 v{VD+i}, {sr(sWS,4)}, s{sXs} offen offset:{1024*i} lds"] for i in range(4)]
                o[0] = [f"s_add_u32 m0, s{sDst}, {sl*G1_XST}", "s_nop 0"] + o[0]
                if ROT and sl == 3: o[-1] = o[-1] + nextgrp(d == 3, regs)
                else: o[-1] = o[-1] + [f"s_add_u32 s{sXs}, s{sXs}, 1024"]
                return o
            ND = 4
            for st in range(RAMP): a.e(dma(st))
            srd(a, sRP, 16, 3584 * 2048)
            if PF:
                r0 = PF0
                parts = [(6, 1024 * 6144, 76, r0 * 6144), (8, 1024 * 7168, 90, r0 * 7168), (10, 1024 * 7168, 90, r0 * 7168)]
                if 'p' in AB or not REPACK: parts = [(6, 1024 * 6144, 62, r0 * 6144), (8, 1024 * 7168, 72, r0 * 7168), (10, 1024 * 7168, 72, r0 * 7168), (16, 3584 * 2048, 39, 0), (14, 1024 * 2048, 11, 0)]
                if ROT: parts = [(16, 3584 * 2048, 199, 0), (14, 1024 * 2048, 57, 0)]
                srd(a, sWU, parts[0][0], parts[0][1])
                a.e([f"s_mov_b32 s{sQ}, {parts[0][3]}", f"s_mov_b32 s{sG}, {parts[0][2] * 8192}"])
                lo = parts[0][2]
                for ptr, sz, n, off in parts[1:]:
                    srd(a, sWG, ptr, sz)
                    a.e([f"s_cmp_ge_u32 s2, {lo}", f"s_cselect_b32 s{sWU}, s{sWG}, s{sWU}", f"s_cselect_b32 s{sWU+1}, s{sWG+1}, s{sWU+1}", f"s_cselect_b32 s{sWU+2}, s{sWG+2}, s{sWU+2}",
                         f"s_cselect_b32 s{sQ}, {(off - lo * 8192) & 0xffffffff}, s{sQ}", f"s_cselect_b32 s{sG}, {n * 8192}, s{sG}"])
                    lo += n
                assert lo == 256
                a.e([f"s_lshl_b32 s{sT0}, s2, 2", f"s_add_u32 s{sT0}, s{sT0}, s{sMw}", f"s_lshl_b32 s{sT0}, s{sT0}, 11", f"s_add_u32 s{sQ}, s{sQ}, s{sT0}",
                     f"v_lshlrev_b32 v{VD+4}, 5, v0"])
                pf = [f"buffer_load_dword v95, v{VD+4}, {sr(sWU,4)}, s{sQ} offen", f"s_add_u32 s{sQ}, s{sQ}, s{sG}"]
        a.e(["v_bfe_u32 v12, v0, 2, 2", "v_lshrrev_b32 v13, 4, v0", "v_lshl_add_u32 v14, v13, 3, v12", "v_and_b32 v15, 3, v0", "v_lshlrev_b32 v15, 3, v15",
             "v_and_b32 v13, 1, v13"])
        for S in sorted(set(stride)):
            if S == 256: a.e(["v_lshl_add_u32 v93, v13, 2, v12"])
            elif S == 192: a.e(["v_mov_b32 v93, v13"])
            else: a.e(["v_lshrrev_b32 v93, 1, v12", "v_lshl_add_u32 v93, v13, 1, v93"])
            a.e(["v_lshlrev_b32 v93, 5, v93", f"v_mul_u32_u24 v94, {S}, v14", "v_add_u32 v94, v94, v15"])
            for b, (k, idx) in enumerate(blocks):
                if stride[b] != S: continue
                ro = {'q': 0, 'g': RO_G, 'u': RO_U}[k]
                a.e([f"v_xor_b32 v95, {32*idx}, v93", f"v_add_u32 v95, {ro}, v95", f"v_add_u32 v{VA+b}, v94, v95"])
        a.e([f"s_lshl_b32 s{sT0}, s{sMw}, 12", f"s_add_u32 s{sT0}, s{sT0}, {G1_XR}", f"v_lshlrev_b32 v{VB}, 4, v0", f"v_add_u32 v{VB}, s{sT0}, v{VB}"])
        def aread(b, sl):
            return [f"ds_read_b64_tr_b16 {vr(AF(b)+2*h,2)}, v{VA+b} offset:{sl*G1_WST + 4*h*stride[b]}" for h in range(2)]
        def bread(p, sl):
            return [f"ds_read_b128 {vr(BF(p,tb),4)}, v{VB} offset:{sl*G1_XST + 1024*tb}" for tb in range(4)]
        def mm(b, tb, p, c=None):
            if blocks[b][0] == 'q' and not isA: return mfma16(ACC(b, tb), BF(p, tb), AF(b), c)
            return mfma16(ACC(b, tb), AF(b), BF(p, tb), c)
        a.e(["v_lshlrev_b32 v94, 4, v0", "v_lshrrev_b32 v12, 3, v0", "v_lshlrev_b32 v12, 12, v12", "v_and_b32 v13, 7, v0",
             f"s_and_b32 s{sT0}, s{sMw}, 2", f"s_lshl_b32 s{sT0}, s{sT0}, 1", f"v_xor_b32 v13, s{sT0}, v13", "v_lshl_add_u32 v93, v13, 4, v12",
             f"s_lshr_b32 s{sT0}, s2, 1", f"s_lshl_b32 s{sT0}, s{sT0}, 2", f"s_add_u32 s{sT0}, s{sT0}, s{sMw}",
             f"s_and_b32 s{sT1}, s2, 1", f"s_lshl_b32 s{sRs}, s{sT0}, 1", f"s_add_u32 s{sRs}, s{sRs}, s{sT1}", f"s_lshl_b32 s{sRs}, s{sRs}, 10",
             f"s_and_b32 s{sT0}, s{sT0}, 31", f"s_lshl_b32 s{sRd}, s{sT0}, 7", f"s_lshl_b32 s{sT1}, s{sT1}, 15", f"s_add_u32 s{sRd}, s{sRd}, s{sT1}",
             f"s_lshr_b32 s{sT0}, s2, 4", f"s_lshl_b32 s{sT0}, s{sT0}, 16", f"s_add_u32 s{sRd}, s{sRd}, s{sT0}", f"s_add_u32 s{sRd}, s{sRd}, {WS_WP + (0 if nw else 7 << 20)}",
             f"s_lshr_b32 s{sT0}, s2, 1", f"s_mul_i32 s{sT2}, s{sT0}, {ACT_TB}", f"s_lshr_b32 s{sT1}, s{sT1}, 1", f"s_add_u32 s{sT2}, s{sT2}, s{sT1}",
             f"s_lshl_b32 s{sT1}, s{sWave}, 11", f"s_add_u32 s{sT2}, s{sT2}, s{sT1}", f"s_add_u32 s{sT2}, s{sT2}, {WS_ACT + 112 * 1024}"] +
            [f"v_mov_b32 v{12+i}, -1" for i in range(4)])
        usepf = PF and nw == 1
        def ops(s):
            o = []
            if s == 0:
                for k in range(RAMP + 1, 4): o += [(('d', k), g) for g in dma(k)]
            if s + 4 < 32 and 'm' not in G1X:
                o += [(('d', s + 4), g) for g in dma(s + 4)]
                if usepf and (not ROT or (s >= 4 and (s & 3) == PFS)): o += [('pf', pf)]
            if s == ZS and 'z' not in AB: o += [('z', [f"buffer_store_dwordx4 v[12:15], v94, {sr(sWS,4)}, s{sT2} offen offset:{1024*i} sc1"]) for i in range(2)]
            if s % 4 == RPS and REPACK:
                if s >= 4 and 's' not in AB: o += [('rs', [f"buffer_store_dwordx4 v[12:15], v93, {sr(sWS,4)}, s{sRd} offen{RST}", f"s_add_u32 s{sRd}, s{sRd}, {1 << 20}"])]
                if s < 28 and 'l' not in AB: o += [('rl', [f"buffer_load_dwordx4 v[12:15], v94, {sr(sRP,4)}, s{sRs} offen", f"s_add_u32 s{sRs}, s{sRs}, {1 << 20}"])]
            return o
        seq = [('d', k) for k in range(min(RAMP + 1, 4)) for _ in range(ND)]
        cnt = []
        for s in range(31):
            idx = [i for i, t in enumerate(seq) if t == ('d', s + 1)]
            cnt.append(len(seq) - 1 - idx[-1] if idx else 0)
            seq += [t for t, _ in ops(s)]
        for s in range(4, 8): cnt[s] = min(cnt[s:28:4])
        a.e([f"s_waitcnt vmcnt({(RAMP - 1) * ND})", "s_barrier"])
        ts(a, 1)
        a.e(bread(0, 0))
        for b in range(10): a.e(aread(b, 0))
        if RAMP < 4: a.e(dma(RAMP))
        def stage(s):
            sl = s & 3; reads = s < 31
            p = sl & 1; nx = (sl + 1) & 3
            c = "0" if s == 0 else None
            a.e("s_waitcnt lgkmcnt(15)")
            if s in (4, 28): tsl0(a)
            a.e([mm(0, tb, p, c) for tb in range(4)])
            if reads: a.e([f"s_waitcnt vmcnt({cnt[s]}) lgkmcnt(0)"] + ([] if 'b' in G1X else ["s_barrier"]))
            else: a.e("s_waitcnt lgkmcnt(0)")
            if s in (4, 28): tsl1(a, sCnt)
            dm = [g for _, g in ops(s)]
            pos = [(b, 2) for b in range(3, 10)] if len(dm) <= 7 else [(b, k) for b in range(3, 10) for k in (2, 3)] if len(dm) <= 14 else [(b, k) for b in range(1, 10) for k in (1, 3)]
            assert len(dm) <= len(pos)
            br = bread(1 - p, nx) if reads and 'r' not in G1X else []
            for b in range(1, 10):
                ar = aread(b - 1, nx) if reads and 'r' not in G1X else [[], []]
                f = [[ar[0]], [ar[1]], [], []]
                if b <= 2 and br: f[2] = [br[2*(b-1)]]; f[3] = [br[2*(b-1)+1]]
                for (pb, k), g in zip(pos, dm):
                    if pb == b: f[k] = f[k] + g
                for tb in range(4):
                    a.e(f[tb]); a.e(mm(b, tb, p, c))
            if reads and 'r' not in G1X: a.e(aread(9, nx))
        for s in range(4): stage(s)
        a.e(f"s_mov_b32 s{sCnt}, 6")
        a.raw(".p2align 6")
        a.lab(f"g1_loop{V}")
        for s in range(4, 8): stage(s)
        a.e([f"s_sub_u32 s{sCnt}, s{sCnt}, 1", f"s_cmp_lg_u32 s{sCnt}, 0", f"s_cbranch_scc1 g1_loop{V}"])
        for s in range(28, 32): stage(s)
        ts(a, 2)
        a.e(["v_lshlrev_b32 v1, 4, v0",
             "v_and_b32 v12, 0x33, v0", "v_lshlrev_b32 v12, 4, v12", "v_bfe_u32 v13, v0, 2, 1", "v_lshl_add_u32 v12, v13, 7, v12", "v_bfe_u32 v13, v0, 3, 1", "v_lshl_add_u32 v3, v13, 10, v12",
             f"s_mov_b32 s{sT2}, {hex(f2u(-LOG2E))}", f"s_mov_b32 s{sCnt}, {hex(f2u(LOG2E * 32 ** -0.5))}",
             f"s_lshl_b32 s{sT0}, s{sMt}, 3", f"s_lshl_b32 s{sT1}, s{sMw}, 1", f"s_add_u32 s{sT0}, s{sT0}, s{sT1}",
             f"s_lshl_b32 s{sQ}, s{sT0}, 11", f"s_lshl_b32 s{sT1}, s{sP}, 18", f"s_add_u32 s{sQ}, s{sQ}, s{sT1}",
             f"s_mul_i32 s{sG}, s{sT0}, {2*ACT_TB}", f"s_lshl_b32 s{sT1}, s{sF0}, 5", f"s_add_u32 s{sG}, s{sG}, s{sT1}",
             f"s_add_u32 s{sG}, s{sG}, {WS_ACT}"])
        if V == 0:
            a.e([f"s_or_b32 s{sT0}, s2, s{sWave}", f"s_cbranch_scc1 g1_noz"] + [f"v_mov_b32 v{4+i}, 0" for i in range(4)] +
                [f"s_mov_b32 s{sT0}, {WS_FLAG}", f"buffer_store_dwordx4 v[4:7], v1, {sr(sWS,4)}, s{sT0} offen"])
            a.lab("g1_noz")
        tmp = [16 + 4 * i for i in range(18)]
        ti = [0]
        def T():
            t = tmp[ti[0] % len(tmp)]; ti[0] += 1; return t
        for hp in range(len(qk) // 2):
            b0 = 2 * hp; idx = qk[b0] >> 1
            if isA:
                isq = idx < 2
                a.e(f"s_add_u32 s{sT0}, s{sQ}, {(WS_Q if isq else WS_K) + (idx & 1) * 131072}")
                for tb in range(4):
                    t = T()
                    for u in range(2):
                        D = ACC(b0 + u, tb)
                        if isq: a.e([f"v_mul_f32 v{D+j}, s{sCnt}, v{D+j}" for j in range(4)])
                        a.e([f"v_cvt_pk_bf16_f32 v{t+2*u+j}, v{D+2*j}, v{D+2*j+1}" for j in range(2)])
                    off = (tb >> 1) * 2048 + (tb & 1) * (1024 if isq else 64)
                    a.e(f"buffer_store_dwordx4 {vr(t,4)}, v{1 if isq else 3}, {sr(sWS,4)}, s{sT0} offen offset:{off}{ST}")
            else:
                a.e(f"s_add_u32 s{sT0}, s{sQ}, {WS_V + (idx & 1) * 131072}")
                for db in range(2):
                    for i in range(2):
                        t = T()
                        for u in range(2):
                            D = ACC(b0 + db, 2 * i + u)
                            a.e([f"v_cvt_pk_bf16_f32 v{t+2*u+j}, v{D+2*j}, v{D+2*j+1}" for j in range(2)])
                        a.e(f"buffer_store_dwordx4 {vr(t,4)}, v1, {sr(sWS,4)}, s{sT0} offen offset:{i*2048 + db*1024}{ST}")
        for qi, q in enumerate(quads):
            b0 = len(qk) + 4 * qi
            for tb in range(4):
                t = T()
                G = [ACC(b0 + u, tb) + j for u in range(2) for j in range(4)]
                U = [ACC(b0 + 2 + u, tb) + j for u in range(2) for j in range(4)]
                a.e([f"v_mul_f32 v{g}, s{sT2}, v{g}" for g in G])
                a.e([f"v_exp_f32 v{g}, v{g}" for g in G])
                a.e([f"v_add_f32 v{g}, 1.0, v{g}" for g in G])
                a.e([f"v_rcp_f32 v{g}, v{g}" for g in G])
                a.e([f"v_mul_f32 v{g}, v{g}, v{u}" for g, u in zip(G, U)])
                a.e([f"v_cvt_pk_bf16_f32 v{t+j}, v{G[2*j]}, v{G[2*j+1]}" for j in range(4)])
                a.e(f"s_add_u32 s{sT0}, s{sG}, {tb*ACT_TB + q*1024}")
                a.e(f"buffer_store_dwordx4 {vr(t,4)}, v1, {sr(sWS,4)}, s{sT0} offen{ST}")
        ts(a, 3)
        if PROF: a.e(["s_waitcnt vmcnt(0)", f"s_mov_b32 s{sWS+2}, {WS_BYTES}"])
        ts(a, 4)
        ts_dump(a, 5, sWS, sWave, 0, sT0)
        a.e("s_endpgm")

    for isA in (0, 1):
        for nw in (0, 1): variant(isA, nw)
    a.lab("g1_exit")
    a.e("s_endpgm")
    return kernel_desc(name, 256), f"; @launch kernel={name} grid=(256,1,1) block=(512,1,1) lds={G1_LDS}"
```

```python
from common import *
import os
ST = os.environ.get('ST', ' sc1')
G1_WST = 20480
G1_XR = 4 * G1_WST
L_CS = G1_XR + 65536
L_ST = L_CS + 2048
L_F = L_ST + 2048
L_P = L_F + 2048
G2_LDS = L_P + 8192
DOT = os.environ.get('G1DOT', '0') == '1'
WS_ST = 41 << 20
WS_CS = 42 << 20
PF0 = int(os.environ.get('G1PF0', '512'))
PFN = int(os.environ.get('G1PFN', '1'))
PFSW = int(os.environ.get('G1PFSW', '3'))
RAMP = int(os.environ.get('G1RAMP', '2'))
XRAMP = int(os.environ.get('G1XRAMP', '1'))
SF = int(os.environ.get('G1SF', '0'))
TAU = [int(c) for c in os.environ.get('G1TAU', '11233333')]
PK = os.environ.get('G1PK', '1') == '1'
NEED = int(os.environ.get('G1NEED', '256'))
TO = int(os.environ.get('G1TO', '2000'))
WSN = 48 << 20

def gseq(mt):
    s = [g for g in range(8) if g != mt]
    s.insert(TAU[mt], mt)
    return s

def stats(D, T):
    o = []
    for i in range(8):
        o += [f"v_lshlrev_b32 v{T+4}, 16, v{D+i}", f"v_and_b32 v{T+5}, 0xffff0000, v{D+i}"]
        if i == 0: o += [f"v_mov_b32 v{T}, v{T+4}", f"v_mov_b32 v{T+2}, v{T+5}", f"v_mul_f32 v{T+1}, v{T+4}, v{T+4}", f"v_mul_f32 v{T+3}, v{T+5}, v{T+5}"]
        else: o += [f"v_add_f32 v{T}, v{T}, v{T+4}", f"v_add_f32 v{T+2}, v{T+2}, v{T+5}", f"v_fmac_f32 v{T+1}, v{T+4}, v{T+4}", f"v_fmac_f32 v{T+3}, v{T+5}, v{T+5}"]
    o += [f"v_add_f32 v{T}, v{T}, v{T+2}", f"v_add_f32 v{T+1}, v{T+1}, v{T+3}", "s_nop 0"]
    for r in (8, 4, 2, 1):
        o += ["s_nop 0"] + [f"v_add_f32_dpp v{T+j}, v{T+j}, v{T+j} row_ror:{r} row_mask:0xf bank_mask:0xf" for j in range(2)]
    for sw in (16, 32):
        o += [f"v_mov_b32 v{T+2}, v{T}", f"v_mov_b32 v{T+3}, v{T+1}", "s_nop 0", f"v_permlane{sw}_swap_b32 v{T}, v{T+2}", f"v_permlane{sw}_swap_b32 v{T+1}, v{T+3}",
              f"v_add_f32 v{T}, v{T}, v{T+2}", f"v_add_f32 v{T+1}, v{T+1}, v{T+3}"]
    o += [f"v_mul_f32 v{T}, {hex(f2u(-1/1024))}, v{T}", f"v_mul_f32 v{T+1}, {hex(f2u(1/1024))}, v{T+1}",
          f"v_fma_f32 v{T+1}, -v{T}, v{T}, v{T+1}", f"v_max_f32 v{T+1}, 0, v{T+1}",
          f"v_cvt_pk_bf16_f32 v{T}, v{T}, v{T+1}", f"v_and_b32 v{T+1}, 0xffff0000, v{T}", f"v_lshlrev_b32 v{T}, 16, v{T}",
          f"v_add_f32 v{T+1}, {hex(f2u(1e-5))}, v{T+1}", f"v_cvt_pk_bf16_f32 v{T+1}, v{T+1}, v{T+1}", f"v_and_b32 v{T+1}, 0xffff0000, v{T+1}",
          f"v_sqrt_f32 v{T+1}, v{T+1}", "s_nop 0", f"v_cvt_pk_bf16_f32 v{T+1}, v{T+1}, v{T+1}", f"v_and_b32 v{T+1}, 0xffff0000, v{T+1}"]
    return o

def gen_g2(a):
    name = "g2_kernel"
    ACC = lambda b, tb: 96 + (b * 4 + tb) * 4
    AF = lambda b: 16 + 4 * b
    BF = lambda p, tb: 56 + 16 * p + 4 * tb
    VA = 1; VB = (11, 94); VD = 88
    sWQ, sWG, sWU, sGU, sWS, sX, sDB = 20, 24, 28, 32, 36, 56, 60
    sWave, sMw, sNw, sMt, sNt, sP, sIsA, sF0 = 40, 41, 42, 43, 44, 45, 46, 47
    sQ, sG, sT0, sT1, sT2, sCnt, sDst, sXs = 48, 49, 50, 51, 52, 53, 54, 55
    sSeq, sB0, sB1, sTau, sOwn, sHi, sQ2, sG2, sPub, sSig, sCS, sV = 64, 65, 66, 67, 68, 69, 94, 95, 96, 97, 98, 99
    def nextgrp(regs):
        o = [f"s_and_b32 s{sT0}, s{sSeq}, 7", f"s_lshr_b32 s{sSeq}, s{sSeq}, 4"]
        for d, b, st in regs: o += [f"s_mul_i32 s{d}, s{sT0}, {st}", f"s_add_u32 s{d}, s{d}, s{b}"]
        return o
    kernel_head(a, name)
    a.e(["s_cmp_ge_u32 s2, 256", "s_cbranch_scc1 g2_exit",
         "s_load_dwordx4 s[4:7], s[0:1], 0", "s_load_dwordx4 s[8:11], s[0:1], 32", "s_load_dwordx2 s[12:13], s[0:1], 72",
         "s_load_dwordx2 s[14:15], s[0:1], 16", "s_load_dwordx2 s[16:17], s[0:1], 48", "s_load_dwordx2 s[18:19], s[0:1], 64",
         "v_lshrrev_b32 v12, 6, v0", "v_and_b32 v0, 63, v0",
         f"v_readfirstlane_b32 s{sWave}, v12",
         f"s_and_b32 s{sT0}, s2, 7", f"s_lshr_b32 s{sT1}, s2, 3",
         f"s_lshl_b32 s{sNt}, s{sT0}, 2", f"s_and_b32 s{sT0}, s{sT1}, 3", f"s_add_u32 s{sNt}, s{sNt}, s{sT0}",
         f"s_lshr_b32 s{sMt}, s{sT1}, 2",
         f"s_lshr_b32 s{sP}, s{sNt}, 1",
         f"s_xor_b32 s{sIsA}, s{sNt}, s{sP}", f"s_and_b32 s{sIsA}, s{sIsA}, 1",
         f"s_mul_i32 s{sF0}, s{sP}, 224",
         f"s_lshl_b32 s{sT0}, s{sIsA}, 5", f"s_add_u32 s{sT0}, s{sT0}, 96",
         f"s_bitcmp1_b32 s{sNt}, 0", f"s_cselect_b32 s{sT0}, s{sT0}, 0", f"s_add_u32 s{sF0}, s{sF0}, s{sT0}",
         f"s_and_b32 s{sMw}, s{sWave}, 3", f"s_lshr_b32 s{sNw}, s{sWave}, 2",
         "v_lshlrev_b32 v95, 4, v0", f"s_lshl_b32 s{sT2}, s2, 3", f"s_add_u32 s{sT2}, s{sT2}, s{sWave}", f"s_lshl_b32 s{sCnt}, s{sT2}, 11",
         f"s_cmp_eq_u32 s{sMt}, 0", f"s_cselect_b32 s{sSeq}, {gseq(0)[0]}, 0",
         f"s_lshl_b32 s{sV}, s{sIsA}, 1", f"s_add_u32 s{sV}, s{sV}, s{sNw}"])
    assert all(gseq(m)[0] == 0 for m in range(1, 8))
    for v in range(1, 4):
        a.e([f"s_cmp_eq_u32 s{sV}, {v}", f"s_cbranch_scc1 g2_v{v}"])
    def hload(d0, d1, va, vb):
        return [[f"v_lshlrev_b32 v{va}, 5, v0", f"buffer_load_dwordx4 {vr(d0,4)}, v{va}, {sr(sWS,4)}, s{sCS} offen sc1"],
                [f"buffer_load_dwordx4 {vr(d1,4)}, v{va}, {sr(sWS,4)}, s{sCS} offen offset:16 sc1"],
                [f"v_lshrrev_b32 v{vb}, 5, v0", f"v_mul_u32_u24 v{vb}, {8192 - 128}, v{vb}", f"v_lshl_add_u32 v{vb}, v0, 2, v{vb}",
                 f"s_lshl_b32 s{sT0}, s{sWave}, 8", f"s_add_u32 m0, s{sT0}, {L_ST}", f"s_lshr_b32 s{sT0}, s{sT0}, 1", f"s_lshl_b32 s{sT1}, s{sMt}, 10", f"s_add_u32 s{sT0}, s{sT0}, s{sT1}",
                 f"s_add_u32 s{sT0}, s{sT0}, {WS_ST}", f"buffer_load_dword v{vb}, {sr(sWS,4)}, s{sT0} offen sc1 lds"]]
    def csaddr(d): return [f"s_lshl_b32 s{sT0}, s{sWave}, 8", f"s_add_u32 s{sT0}, s{sT0}, {L_CS}", f"v_lshl_add_u32 v{d}, v0, 2, s{sT0}"]
    def hsum(d0, d1, va):
        return ([f"v_add_f32 v{d0+i}, v{d0+i}, v{d1+i}" for i in range(4)] + [f"v_add_f32 v{d0}, v{d0}, v{d0+1}", f"v_add_f32 v{d0+2}, v{d0+2}, v{d0+3}", f"v_add_f32 v{d0}, v{d0}, v{d0+2}"] +
                csaddr(va) + [f"ds_write_b32 v{va}, v{d0}"])

    def variant(isA, nw):
        V = isA * 2 + nw
        if isA: S0, SG, RO_G, RO_U = 256, 192, 8192, 14336
        else: S0, SG, RO_G, RO_U = 128, 256, 4096, 12288
        if isA: qk = list(range(6)) if nw == 0 else [6, 7]; quads = [0] if nw == 0 else [1, 2]
        else: qk = [2 * nw, 2 * nw + 1]; quads = [2 * nw, 2 * nw + 1]
        blocks = [('q', i) for i in qk]
        for q in quads: blocks += [('g', 2 * q), ('g', 2 * q + 1), ('u', 2 * q), ('u', 2 * q + 1)]
        stride = [S0 if k == 'q' else SG for k, _ in blocks]
        cso = [2 * {'q': 0, 'g': S0, 'u': S0 + SG}[k] + 64 * i for k, i in blocks]
        a.lab(f"g2_v{V}")
        seq = []
        def emit(items):
            for t, g in items: a.e(g); seq.append(t)
        rows = [('r', [f"buffer_load_dwordx4 v[{96+4*i}:{99+4*i}], v95, {sr(sX,4)}, s{sCnt} offen offset:{1024*i}"]) for i in range(2)]
        NOST = os.environ.get('G1NOST', '')
        if NOST == '1': rows = [('r', [f"buffer_load_dwordx4 v[{96+4*i}:{99+4*i}], v95, {sr(sX,4)}, 0 offen offset:{1024*i}"]) for i in range(2)]
        def slot_decode(dst, S, base_s, gstride, kind):
            o = [f"v_add_u32 v12, {base_s}, v0"]
            if S == 192:
                o += ["v_mul_u32_u24 v13, 43691, v12", "v_lshrrev_b32 v13, 19, v13", "v_mul_u32_u24 v14, 12, v13", "v_sub_u32 v14, v12, v14",
                      "v_bfe_u32 v15, v13, 3, 1", "v_lshlrev_b32 v15, 1, v15", "v_xor_b32 v14, v14, v15"]
            elif S == 256:
                o += ["v_lshrrev_b32 v13, 4, v12", "v_and_b32 v14, 15, v12", "v_and_b32 v15, 3, v13", "v_lshlrev_b32 v15, 1, v15", "v_xor_b32 v14, v14, v15",
                      "v_and_b32 v15, 8, v13", "v_xor_b32 v14, v14, v15"]
            else:
                o += ["v_lshrrev_b32 v13, 3, v12", "v_and_b32 v14, 7, v12", "v_and_b32 v15, 2, v13", "v_xor_b32 v14, v14, v15",
                      "v_bfe_u32 v15, v13, 3, 1", "v_lshlrev_b32 v15, 2, v15", "v_xor_b32 v14, v14, v15"]
            o += [f"v_mul_u32_u24 v13, {gstride}, v13"]
            if kind == 'qk':
                o += ["v_lshrrev_b32 v15, 3, v14", "v_lshl_add_u32 v13, v15, 11, v13", "v_and_b32 v14, 7, v14"]
            o += [f"v_lshl_add_u32 v{dst}, v14, 4, v13"]
            return o
        if nw == 0:
            a.e([f"s_lshl_b32 s{sT0}, s{sMw}, 6", f"s_lshl_b32 s{sDst}, s{sMw}, 10"])
            if isA: plan = [('q', 0), ('q', 256), ('g', 0), ('gu', None), ('u', 128)]
            else: plan = [('q', 0), ('g', 0), ('g', 256), ('u', 0), ('u', 256)]
            for i, (k, sb) in enumerate(plan):
                if k == 'gu':
                    a.e([f"s_cmp_lt_u32 s{sMw}, 2", f"s_cselect_b32 s{sT1}, 384, 0", f"s_add_u32 s{sT1}, s{sT1}, s{sT0}", f"s_sub_u32 s{sT1}, s{sT1}, 128"])
                    a.e(slot_decode(VD + i, SG, f"s{sT1}", 7168, 'g'))
                else:
                    a.e([f"s_add_u32 s{sT1}, s{sT0}, {sb}"])
                    if k == 'q': a.e(slot_decode(VD + i, S0, f"s{sT1}", 6144, 'qk' if isA else 'v'))
                    else: a.e(slot_decode(VD + i, SG, f"s{sT1}", 7168, 'g'))
            srds = [{'q': sWQ, 'g': sWG, 'u': sWU, 'gu': sGU}[k] for k, _ in plan]
            soffs = [sQ if k == 'q' else sG for k, _ in plan]
            regs = [(sQ, sB0, 128 * 6144), (sG, sB1, 128 * 7168)]
            a.e([f"s_lshl_b32 s{sB0}, s{sP}, 7"] + ([] if isA else [f"s_add_u32 s{sB0}, s{sB0}, 4096"]) + [f"s_lshl_b32 s{sB1}, s{sF0}, 1"] + nextgrp(regs))
            a.e("s_waitcnt lgkmcnt(0)")
            ts(a, 0)
            srd(a, sX, 4, 2048 * 2048)
            if SF == 0: emit(rows)
            srd(a, sWQ, 6, 1024 * 6144)
            srd(a, sWG, 8, 1024 * 7168)
            srd(a, sWU, 10, 1024 * 7168)
            if isA:
                a.e([f"s_cmp_lt_u32 s{sMw}, 2", f"s_cselect_b32 s{sGU}, s{sWG}, s{sWU}", f"s_cselect_b32 s{sGU+1}, s{sWG+1}, s{sWU+1}",
                     f"s_mov_b32 s{sGU+2}, {1024*7168}", f"s_mov_b32 s{sGU+3}, 0x00020000"])
            def dma(d):
                sl = d & 3
                o = [[f"s_add_u32 m0, s{sDst}, {sl*G1_WST + 4096*i}", "s_nop 0", f"buffer_load_dwordx4 v{VD+i}, {sr(srds[i],4)}, s{soffs[i]} offen lds"] for i in range(5)]
                o[-1] = o[-1] + (nextgrp(regs) if sl == 3 else [f"s_add_u32 s{sQ}, s{sQ}, {32*6144}", f"s_add_u32 s{sG}, s{sG}, {32*7168}"])
                return [(('d', d), g) for g in o]
            NPRE, NALL = RAMP, 4
            assert RAMP < 4
            dtag = lambda s: ('d', s)
        else:
            a.e(["v_lshrrev_b32 v12, 3, v0", "v_lshrrev_b32 v13, 4, v0", "v_xor_b32 v13, v13, v0", "v_and_b32 v13, 7, v13",
                 "v_lshlrev_b32 v12, 11, v12", f"v_lshl_add_u32 v{VD}, v13, 4, v12", f"v_xor_b32 v12, 64, v{VD}", f"v_add_u32 v{VD+1}, {16384 - 1024}, v12"])
            regs = [(sXs, sB0, 256)]
            a.e([f"s_lshl_b32 s{sB0}, s{sMt}, 19", f"s_lshl_b32 s{sT0}, s{sMw}, 17", f"s_add_u32 s{sB0}, s{sB0}, s{sT0}"] + nextgrp(regs) +
                [f"s_lshl_b32 s{sDst}, s{sMw}, 13", f"s_add_u32 s{sDst}, s{sDst}, {G1_XR}", "s_waitcnt lgkmcnt(0)"])
            ts(a, 0)
            srd(a, sX, 4, 2048 * 2048)
            if SF == 0: emit(rows)
            def dma(j):
                o = []
                for tb in range(4):
                    so = sT1 if tb else sXs
                    o.append([f"s_add_u32 m0, s{sDst}, {(j & 1) * 32768 + tb * 2048}", f"s_add_u32 s{sT1}, s{sXs}, {tb * 32768}" if tb else "s_nop 0",
                              f"buffer_load_dwordx4 v{VD}, {sr(sX,4)}, s{so} offen lds"])
                    o.append([f"buffer_load_dwordx4 v{VD+1}, {sr(sX,4)}, s{so} offen offset:1024 lds"])
                o[-1] = o[-1] + (nextgrp(regs) if j & 1 else [f"s_add_u32 s{sXs}, s{sXs}, 128"])
                return [(('d', j), g) for g in o]
            NPRE, NALL = XRAMP, 2
            dtag = lambda s: ('d', s >> 1)
        def table():
            for m in range(8):
                v = sum(g << (4 * i) for i, g in enumerate(gseq(m)[1:])) | (TAU[m] << 28)
                a.e([f"s_cmp_eq_u32 s{sMt}, {m}", f"s_cselect_b32 s{sSeq}, {hex(v)}, s{sSeq}"])
            a.e([f"s_lshr_b32 s{sTau}, s{sSeq}, 28", f"s_sub_u32 s{sTau}, 7, s{sTau}", f"s_sub_u32 s{sPub}, s{sTau}, 1"])
        for st in range(NPRE):
            if st == 1: table()
            emit(dma(st))
            if SF == st + 1 or (SF > NPRE and st == NPRE - 1): emit(rows)
        if NPRE < 2: table()
        srd(a, sWS, 12, WSN)
        srd(a, sDB, 18, 256)
        a.e([f"s_lshl_b32 s{sOwn}, 0x11111111, s{sMw}", f"s_mov_b32 s{sHi}, {'0x3f803f80' if DOT else '0xffff0000'}",
             f"s_cmp_eq_u32 s{sWave}, 0", f"s_cselect_b32 s{sSig}, s{sPub}, 99",
             f"s_lshl_b32 s{sCS}, s{sNt}, 14", f"s_lshl_b32 s{sT0}, s{sWave}, 11", f"s_add_u32 s{sCS}, s{sCS}, s{sT0}", f"s_add_u32 s{sCS}, s{sCS}, {WS_CS}"])
        a.e(csaddr(12) + ["v_mov_b32 v13, 0", f"ds_write_b32 v12, v13 offset:{L_F - L_CS}"])
        if nw == 1:
            def pick(parts, R, so, st):
                srd(a, R, parts[0][0], parts[0][1])
                a.e([f"s_mov_b32 s{so}, {parts[0][3]}", f"s_mov_b32 s{st}, {parts[0][2] * 8192}"])
                lo = parts[0][2]
                for ptr, sz, n, off in parts[1:]:
                    srd(a, sWG, ptr, sz)
                    a.e([f"s_cmp_ge_u32 s2, {lo}", f"s_cselect_b32 s{R}, s{sWG}, s{R}", f"s_cselect_b32 s{R+1}, s{sWG+1}, s{R+1}", f"s_cselect_b32 s{R+2}, s{sWG+2}, s{R+2}",
                         f"s_cselect_b32 s{so}, {(off - lo * 8192) & 0xffffffff}, s{so}", f"s_cselect_b32 s{st}, {n * 8192}, s{st}"])
                    lo += n
                assert lo == 256
                a.e(f"s_add_u32 s{so}, s{so}, s{sT0}")
            a.e([f"s_lshl_b32 s{sT0}, s2, 2", f"s_add_u32 s{sT0}, s{sT0}, s{sMw}", f"s_lshl_b32 s{sT0}, s{sT0}, 11", f"v_lshlrev_b32 v{VD+2}, 5, v0"])
            pick([(6, 1024 * 6144, 76, PF0 * 6144), (8, 1024 * 7168, 90, PF0 * 7168), (10, 1024 * 7168, 90, PF0 * 7168)], sWU, sQ, sG)
            pick([(16, 3584 * 2048, 199, 0), (14, 1024 * 2048, 57, 0)], sGU, sQ2, sG2)
            pf = ('pf', [f"buffer_load_dword v{VD+3}, v{VD+2}, {sr(sWU,4)}, s{sQ} offen", f"s_add_u32 s{sQ}, s{sQ}, s{sG}"])
            emit([pf] * int(os.environ.get('G1PFP', '0')))
        a.e(["v_bfe_u32 v12, v0, 2, 2", "v_lshrrev_b32 v13, 4, v0", "v_lshl_add_u32 v14, v13, 3, v12", "v_and_b32 v15, 3, v0", "v_lshlrev_b32 v15, 3, v15",
             "v_and_b32 v13, 1, v13"])
        for S in sorted(set(stride)):
            if S == 256: a.e(["v_lshl_add_u32 v93, v13, 2, v12"])
            elif S == 192: a.e(["v_mov_b32 v93, v13"])
            else: a.e(["v_lshrrev_b32 v93, 1, v12", "v_lshl_add_u32 v93, v13, 1, v93"])
            a.e(["v_lshlrev_b32 v93, 5, v93", f"v_mul_u32_u24 v94, {S}, v14", "v_add_u32 v94, v94, v15"])
            for b, (k, idx) in enumerate(blocks):
                if stride[b] != S: continue
                ro = {'q': 0, 'g': RO_G, 'u': RO_U}[k]
                a.e([f"v_xor_b32 v11, {32*idx}, v93", f"v_add_u32 v11, {ro}, v11", f"v_add_u32 v{VA+b}, v94, v11"])
        a.e([f"s_lshl_b32 s{sT0}, s{sMw}, 13", f"s_add_u32 s{sT0}, s{sT0}, {G1_XR}",
             "v_and_b32 v12, 15, v0", "v_lshrrev_b32 v13, 1, v12", "v_lshrrev_b32 v14, 4, v0", "v_xor_b32 v13, v13, v14",
             f"v_lshl_add_u32 v14, v12, 7, s{sT0}", f"v_lshl_add_u32 v{VB[0]}, v13, 4, v14", f"v_xor_b32 v{VB[1]}, 64, v{VB[0]}"])
        a.e(f"s_waitcnt vmcnt({len(seq) - 1 - max(i for i, t in enumerate(seq) if t == 'r')})")
        if not NOST: a.e(stats(96, 104))
        a.e(["v_cmp_eq_u32 vcc, 0, v0", "v_lshlrev_b32 v106, 13, v0", f"s_lshl_b32 s{sT0}, s{sT2}, 2", f"s_add_u32 s{sT0}, s{sT0}, {WS_ST}",
             "v_cndmask_b32 v104, v105, v104, vcc", "s_mov_b64 exec, 3"])
        emit([('s', [f"buffer_store_dword v104, v106, {sr(sWS,4)}, s{sT0} offen sc1", "s_mov_b64 exec, -1"])])
        a.e([f"s_lshr_b32 s{sT0}, s2, 1", f"s_mul_i32 s{sT2}, s{sT0}, {ACT_TB}", f"s_and_b32 s{sT0}, s2, 1", f"s_lshl_b32 s{sT0}, s{sT0}, 14", f"s_add_u32 s{sT2}, s{sT2}, s{sT0}",
             f"s_lshl_b32 s{sT0}, s{sWave}, 11", f"s_add_u32 s{sT2}, s{sT2}, s{sT0}", f"s_add_u32 s{sT2}, s{sT2}, {WS_ACT + 112 * 1024}"])
        def aread(b, sl):
            return [f"ds_read_b64_tr_b16 {vr(AF(b)+2*h,2)}, v{VA+b} offset:{sl*G1_WST + 4*h*stride[b]}" for h in range(2)]
        def bread(s):
            return [f"ds_read_b128 {vr(BF(s&1,tb),4)}, v{VB[s&1]} offset:{((s>>1)&1)*32768 + 2048*tb}" for tb in range(4)]
        isV = lambda b: blocks[b][0] == 'q' and not isA
        def mm(b, tb, p, c=None):
            if isV(b): return mfma16(ACC(b, tb), BF(p, tb), AF(b), c)
            return mfma16(ACC(b, tb), AF(b), BF(p, tb), c)
        def ops(s):
            o = []
            if s == 0:
                for k in range(NPRE + 1, NALL): o += dma(k)
            if nw == 0 and s + 4 < 32: o += dma(s + 4)
            if nw == 1 and s < 28: o += dma((s + 3) >> 1) if s & 1 else [pf] * PFN
            if s == 28:
                o += [('z', ([f"v_mov_b32 v{12+k}, -1" for k in range(4)] if i == 0 else []) + [f"buffer_store_dwordx4 v[12:15], v95, {sr(sWS,4)}, s{sT2} offen offset:{1024*i} sc1"]) for i in range(2)]
                o += [('c', [f"buffer_load_dword v93, off, {sr(sDB,4)}, 0 sc1"])]
            if s == 29: o += [('h', g) for g in hload(12, 88, 92, 93)]
            return o
        first = len(seq) - 1 - max(i for i, t in enumerate(seq) if t == ('d', 0))
        sq = list(seq)
        if NPRE < NALL: sq += [t for t, _ in dma(NPRE)]
        cnt = []
        for s in range(31):
            want = [dtag(s + 1)] + (['c'] if s == 29 else []) + (['h'] if s == 30 else [])
            cnt.append(len(sq) - 1 - max(i for i, t in enumerate(sq) if t in want))
            sq += [t for t, _ in ops(s)]
        for s in range(4, 8): cnt[s] = min(cnt[s:28:4])
        a.e([f"s_waitcnt vmcnt({first}) lgkmcnt(0)", "s_barrier"])
        ts(a, 1)
        a.e(bread(0))
        for b in range(10): a.e(aread(b, 0))
        if NPRE < NALL: emit(dma(NPRE))
        SG4 = [4, 8, 12, 88]
        def csread(b):
            if isV(b): return [f"ds_read_b32 v{AF(b)}, v93 offset:{cso[b]}", []]
            return [f"ds_read_b128 {vr(AF(b),4)}, v92 offset:{cso[b]}", []]
        sto = lambda tb: (tb >> 1) * 256 + (tb & 1) * 64
        def eaddr():
            return ["v_lshrrev_b32 v92, 4, v0", "v_lshlrev_b32 v92, 4, v92", "v_and_b32 v93, 15, v0", "v_lshlrev_b32 v93, 2, v93",
                    f"s_lshl_b32 s{sT0}, s{sMw}, 9", f"s_add_u32 s{sT0}, s{sT0}, {L_ST}", f"v_add_u32 v94, s{sT0}, v93", f"v_add_u32 v95, s{sT0}, v92",
                    f"v_add_u32 v92, {L_CS}, v92", f"v_add_u32 v93, {L_CS}, v93"]
        def stread():
            o = [f"ds_read2_b32 {vr(56+2*tb,2)}, v94 offset0:{sto(tb)//4} offset1:{sto(tb)//4+32}" for tb in range(4)]
            if not isA: o += [f"ds_read_b128 {vr(SG4[tb],4)}, v95 offset:{sto(tb)+128}" for tb in range(4)]
            return o
        ucs = [0]
        def cs(b, s):
            ucs[0] += 1
            L = f"g2_c{V}_{ucs[0]}"
            R = [14, 15, 93][b >> 2]
            a.e([f"s_bitcmp1_b32 s{sOwn}, {b + 2 * nw}", f"s_cbranch_scc0 {L}"])
            for r in range(4):
                if DOT:
                    a.e(f"v_dot2_f32_bf16 v{R}, v{AF(b)+r}, s{sHi}, {'0' if r + s == 0 else 'v%d' % R}")
                    continue
                a.e([f"v_lshlrev_b32 v12, 16, v{AF(b)+r}", f"v_and_b32 v13, s{sHi}, v{AF(b)+r}"])
                a.e([f"v_add_f32 v{R}, v12, v13"] if r + s == 0 else [f"v_add_f32 v{R}, v{R}, v12", f"v_add_f32 v{R}, v{R}, v13"])
            if s == 3:
                a.e(["v_and_b32 v12, 15, v0", "v_lshrrev_b32 v13, 4, v0", "v_lshlrev_b32 v12, 4, v12", "v_lshl_add_u32 v12, v13, 2, v12", f"v_add_u32 v12, {L_P}, v12",
                     f"ds_write_b32 v12, v{R} offset:{4 * cso[b]}"])
            a.lab(L)
        def stage(s, docs=False, hooks=False):
            sl = s & 3; reads = s < 31
            p = sl & 1; nx = (sl + 1) & 3
            c = "0" if s == 0 else None
            a.e("s_waitcnt lgkmcnt(15)")
            if s in (4, 28): tsl0(a)
            for tb in range(4):
                a.e(mm(0, tb, p, c))
                if s == 31 and tb < 2: a.e(eaddr()[5*tb:5*tb+5])
            a.e([f"s_waitcnt vmcnt({cnt[s]}) lgkmcnt(0)" if reads else "s_waitcnt lgkmcnt(0)", "s_barrier"])
            if s in (4, 28): tsl1(a, sCnt)
            if hooks and sl == 0:
                a.e([f"s_cmp_eq_u32 s{sCnt}, s{sPub}", f"s_cbranch_scc1 g2_pub{V}"]); a.lab(f"g2_pubr{V}")
            if hooks and sl == 3 and nw == 0:
                a.e([f"s_cmp_eq_u32 s{sCnt}, s{sSig}", f"s_cbranch_scc1 g2_sig{V}"]); a.lab(f"g2_sigr{V}")
            if s == 29:
                a.e([f"v_readfirstlane_b32 s{sT0}, v93", "s_nop 0", f"s_cmp_lg_u32 s{sT0}, {NEED}", f"s_cbranch_scc1 g2_bad{V}"]); a.lab(f"g2_badr{V}")
            dm = [g for _, g in ops(s)]
            if s == 30: dm = [hsum(12, 88, 92)]
            pos = [(b, 2) for b in range(3, 10)] if len(dm) <= 7 else [(b, k) for b in range(3, 10) for k in (2, 3)] if len(dm) <= 14 else [(b, k) for b in range(1, 10) for k in (1, 3)]
            if len(dm) == 8: pos = [(b, k) for b in (3, 5, 7, 9) for k in (2, 3)] if os.environ.get('G1XP', '2') == '1' else [(b, 2) for b in range(3, 10)] + [(9, 3)] if os.environ.get('G1XP', '2') == '2' else pos
            assert len(dm) <= len(pos)
            br = bread(s + 1) if reads else [f"ds_read_b32 v2, v93 offset:{L_F - L_CS}"] + stread()
            for b in range(1, 10):
                ar = aread(b - 1, nx) if reads else csread(b - 1)
                f = [[ar[0]], [ar[1]], br[2*b-2:2*b-1], br[2*b-1:2*b]]
                for (pb, k), g in zip(pos, dm):
                    if pb == b: f[k] = f[k] + g
                if docs: cs(b - 1, sl)
                for tb in range(4):
                    a.e(f[tb]); a.e(mm(b, tb, p, c))
            if docs: cs(9, sl)
            a.e(aread(9, nx) if reads else csread(9))
        for s in range(4): stage(s)
        a.e(f"s_mov_b32 s{sCnt}, 6")
        a.raw(".p2align 6")
        a.lab(f"g2_loop{V}")
        if nw == 1:
            a.e([f"s_cmp_eq_u32 s{sCnt}, {7 - PFSW}"] + [f"s_cselect_b32 s{sWU+i}, s{sGU+i}, s{sWU+i}" for i in range(3)] + [f"s_cselect_b32 s{sQ}, s{sQ2}, s{sQ}", f"s_cselect_b32 s{sG}, s{sG2}, s{sG}"])
        a.e([f"s_cmp_eq_u32 s{sCnt}, s{sTau}", f"s_cbranch_scc1 g2_sp{V}"])
        for s in range(4, 8): stage(s, hooks=True)
        a.e([f"s_sub_u32 s{sCnt}, s{sCnt}, 1", f"s_cmp_lg_u32 s{sCnt}, 0", f"s_cbranch_scc1 g2_loop{V}"])
        for s in range(28, 32): stage(s)
        ts(a, 2)
        a.e(["s_waitcnt lgkmcnt(4)", f"v_readfirstlane_b32 s{sT0}, v2", "v_lshlrev_b32 v1, 4, v0", f"s_cmp_lg_u32 s{sT0}, 0", "s_cbranch_scc1 g2_rec"])
        a.lab(f"g2_ep{V}")
        if not isA: a.e([f"ds_read_b128 {vr(72+4*tb,4)}, v95 offset:{sto(tb)}" for tb in range(4)])
        else:
            a.e(["v_and_b32 v12, 0x33, v0", "v_lshlrev_b32 v12, 4, v12", "v_bfe_u32 v13, v0, 2, 1", "v_lshl_add_u32 v12, v13, 7, v12", "v_bfe_u32 v13, v0, 3, 1", "v_lshl_add_u32 v3, v13, 10, v12"])
        a.e([f"v_rcp_f32 v{65+2*tb}, v{57+2*tb}" for tb in range(4)])
        if not isA: a.e([f"v_rcp_f32 v{SG4[tb]+j}, v{SG4[tb]+j}" for tb in range(4) for j in range(4)])
        a.e([
             f"s_lshl_b32 s{sT0}, s{sMt}, 3", f"s_lshl_b32 s{sT1}, s{sMw}, 1", f"s_add_u32 s{sT0}, s{sT0}, s{sT1}",
             f"s_lshl_b32 s{sQ}, s{sT0}, 11", f"s_lshl_b32 s{sT1}, s{sP}, 18", f"s_add_u32 s{sQ}, s{sQ}, s{sT1}",
             f"s_mul_i32 s{sG}, s{sT0}, {2*ACT_TB}", f"s_lshl_b32 s{sT1}, s{sF0}, 5", f"s_add_u32 s{sG}, s{sG}, s{sT1}",
             f"s_add_u32 s{sG}, s{sG}, {WS_ACT}"])
        a.e([f"v_mul_f32 v{64+2*tb}, {hex(f2u(-LOG2E))}, v{65+2*tb}" for tb in range(4)])
        if V == 2: a.e([f"v_mul_f32 v{72+2*tb}, {hex(f2u(LOG2E * 32 ** -0.5))}, v{65+2*tb}" for tb in range(4)])
        a.e("s_waitcnt lgkmcnt(0)")
        def vop(op, d, *src):
            if not PK: return [f"v_{op}_f32 v{d+j}, " + ", ".join(f"v{x[0]}" if isinstance(x, tuple) else f"v{x+j}" for x in src) for j in range(4)]
            lo = ",".join(str(x[0] & 1) if isinstance(x, tuple) else "0" for x in src); hi = ",".join(str(x[0] & 1) if isinstance(x, tuple) else "1" for x in src)
            return [f"v_pk_{op}_f32 {vr(d+j,2)}, " + ", ".join(vr(x[0] & ~1, 2) if isinstance(x, tuple) else vr(x + j, 2) for x in src) + f" op_sel:[{lo}] op_sel_hi:[{hi}]" for j in (0, 2)]
        pack = lambda t, D, E: [f"v_cvt_pk_bf16_f32 v{t+2*u+j}, v{Z+2*j}, v{Z+2*j+1}" for u, Z in enumerate((D, E)) for j in range(2)]
        for hp in range(len(qk) // 2):
            b0 = 2 * hp; idx = qk[b0] >> 1
            if isA:
                isq = idx < 2
                a.e(f"s_add_u32 s{sT0}, s{sQ}, {(WS_Q if isq else WS_K) + (idx & 1) * 131072}")
                for tb in range(4):
                    D = [ACC(b0 + u, tb) for u in range(2)]
                    for u in range(2): a.e(vop('fma', D[u], AF(b0 + u), (56 + 2 * tb,), D[u]))
                    for u in range(2): a.e(vop('mul', D[u], D[u], (72 + 2 * tb if isq else 65 + 2 * tb,)))
                    a.e(pack(D[0], *D))
                    off = (tb >> 1) * 2048 + (tb & 1) * (1024 if isq else 64)
                    a.e(f"buffer_store_dwordx4 {vr(D[0],4)}, v{1 if isq else 3}, {sr(sWS,4)}, s{sT0} offen offset:{off}{ST}")
            else:
                a.e(f"s_add_u32 s{sT0}, s{sQ}, {WS_V + (idx & 1) * 131072}")
                for db in range(2):
                    for i in range(2):
                        D = [ACC(b0 + db, 2 * i + u) for u in range(2)]
                        for u in range(2): a.e(vop('fma', D[u], 72 + 4 * (2 * i + u), (AF(b0 + db),), D[u]))
                        for u in range(2): a.e(vop('mul', D[u], D[u], SG4[2 * i + u]))
                        a.e(pack(D[0], *D))
                        a.e(f"buffer_store_dwordx4 {vr(D[0],4)}, v1, {sr(sWS,4)}, s{sT0} offen offset:{i*2048 + db*1024}{ST}")
        for qi, q in enumerate(quads):
            b0 = len(qk) + 4 * qi
            for tb in range(4):
                G = [ACC(b0 + u, tb) for u in range(2)]; U = [ACC(b0 + 2 + u, tb) for u in range(2)]
                for u in range(2): a.e(vop('fma', G[u], AF(b0 + u), (56 + 2 * tb,), G[u]))
                for u in range(2): a.e(vop('mul', G[u], G[u], (64 + 2 * tb,)))
                a.e([f"v_exp_f32 v{g+j}, v{g+j}" for g in G for j in range(4)])
                for u in range(2): a.e(vop('fma', U[u], AF(b0 + 2 + u), (56 + 2 * tb,), U[u]))
                for u in range(2): a.e(vop('fma', G[u], G[u], (57 + 2 * tb,), (57 + 2 * tb,)))
                a.e([f"v_rcp_f32 v{g+j}, v{g+j}" for g in G for j in range(4)])
                a.e(f"s_add_u32 s{sT0}, s{sG}, {tb*ACT_TB + q*1024}")
                for u in range(2): a.e(vop('mul', G[u], G[u], U[u]))
                a.e(pack(G[0], *G))
                a.e(f"buffer_store_dwordx4 {vr(G[0],4)}, v1, {sr(sWS,4)}, s{sT0} offen{ST}")
        if V == 0:
            a.e([f"s_or_b32 s{sT0}, s2, s{sWave}", f"s_cbranch_scc1 g2_noz"] + [f"v_mov_b32 v{4+i}, 0" for i in range(4)] +
                [f"s_mov_b32 s{sT0}, {WS_FLAG}", f"buffer_store_dwordx4 v[4:7], v1, {sr(sWS,4)}, s{sT0} offen"])
            a.lab("g2_noz")
        ts(a, 3)
        if PROF: a.e(["s_waitcnt vmcnt(0)", f"s_mov_b32 s{sWS+2}, {WS_BYTES}"])
        ts(a, 4)
        ts_dump(a, 5, sWS, sWave, 0, sT0)
        a.e("s_endpgm")
        a.raw(".p2align 6")
        a.lab(f"g2_sp{V}")
        for s in range(4, 8): stage(s, docs=True)
        a.e([f"s_sub_u32 s{sCnt}, s{sCnt}, 1", f"s_branch g2_loop{V}"])
        a.lab(f"g2_pub{V}")
        a.e([f"s_lshl_b32 s{sT0}, s{sWave}, 10", f"s_add_u32 s{sT0}, s{sT0}, {L_P}", f"v_add_u32 v93, s{sT0}, v95", "ds_read_b128 v[12:15], v93",
             "v_lshlrev_b32 v93, 5, v0", f"s_lshl_b32 s{sT0}, s{sMt}, 2", f"s_add_u32 s{sT0}, s{sT0}, s{sCS}", "s_waitcnt lgkmcnt(0)",
             "v_add_f32 v12, v12, v13", "v_add_f32 v14, v14, v15", "v_add_f32 v12, v12, v14",
             f"buffer_store_dword v12, v93, {sr(sWS,4)}, s{sT0} offen sc1", f"s_branch g2_pubr{V}"])
        if nw == 0:
            a.lab(f"g2_sig{V}")
            a.e(["v_mov_b32 v12, 1", "s_mov_b64 exec, 1", f"buffer_atomic_add v12, off, {sr(sDB,4)}, 0 sc1", "s_mov_b64 exec, -1", f"s_branch g2_sigr{V}"])
        a.lab(f"g2_bad{V}")
        a.e(["v_lshlrev_b32 v92, 2, v0", f"v_add_u32 v92, {L_F}, v92", "ds_write_b32 v92, v92", f"s_branch g2_badr{V}"])
        a.lab(f"g2_rd{V}")
        a.e(stread())
        for b in range(10): a.e(csread(b))
        a.e(["s_waitcnt lgkmcnt(0)", f"s_branch g2_ep{V}"])

    for isA in (0, 1):
        for nw in (0, 1): variant(isA, nw)
    a.lab("g2_rec")
    a.e("s_waitcnt vmcnt(0) lgkmcnt(0)")
    srd(a, sWQ, 6, 1024 * 6144)
    srd(a, sWG, 8, 1024 * 7168)
    srd(a, sWU, 10, 1024 * 7168)
    a.e(f"s_mov_b32 s{sCnt}, {TO}")
    a.lab("g2_rpoll")
    a.e([f"buffer_load_dword v16, off, {sr(sDB,4)}, 0 sc1", "s_waitcnt vmcnt(0)", f"v_readfirstlane_b32 s{sT0}, v16", "s_nop 0", f"s_cmp_eq_u32 s{sT0}, {os.environ.get('G1NEED2', NEED)}", "s_cbranch_scc1 g2_rok",
         "s_sleep 2", f"s_sub_u32 s{sCnt}, s{sCnt}, 1", f"s_cmp_lg_u32 s{sCnt}, 0", "s_cbranch_scc1 g2_rpoll"])
    a.e([f"s_lshl_b32 s{sT1}, s{sMt}, 19", f"s_lshl_b32 s{sT0}, s{sWave}, 16", f"s_add_u32 s{sT1}, s{sT1}, s{sT0}",
         f"s_lshl_b32 s{sT0}, s{sWave}, 8", f"s_add_u32 s{sT0}, s{sT0}, {L_ST}", f"v_mov_b32 v30, s{sT0}", f"s_mov_b32 s{sCnt}, 32"])
    a.lab("g2_rst")
    a.e([f"buffer_load_dwordx4 v[{16+4*i}:{19+4*i}], v1, {sr(sX,4)}, s{sT1} offen offset:{1024*i}" for i in range(2)] + ["s_waitcnt vmcnt(0)"])
    a.e(stats(16, 24))
    a.e(["ds_write2_b32 v30, v24, v25 offset1:32", "v_add_u32 v30, 4, v30", f"s_add_u32 s{sT1}, s{sT1}, 2048", f"s_sub_u32 s{sCnt}, s{sCnt}, 1", f"s_cmp_lg_u32 s{sCnt}, 0", "s_cbranch_scc1 g2_rst"])
    a.e([f"s_lshl_b32 s{sT0}, s{sWave}, 6", f"v_add_u32 v16, s{sT0}, v0", "v_mov_b32 v17, 0x40000000",
         f"s_lshl_b32 s{sT0}, s{sIsA}, 6", f"s_add_u32 s{sT0}, s{sT0}, 64",
         f"s_lshl_b32 s{sT1}, s{sIsA}, 5", f"s_sub_u32 s{sT1}, 128, s{sT1}",
         "v_lshrrev_b32 v18, 6, v16", "v_lshlrev_b32 v18, 11, v18", "v_lshl_add_u32 v18, v0, 1, v18",
         f"v_cmp_gt_u32 vcc, s{sT0}, v16", f"v_subrev_u32 v16, s{sT0}, v16", "v_lshlrev_b32 v19, 1, v16", "v_cndmask_b32 v18, v17, v18, vcc",
         f"v_cmp_gt_u32 vcc, s{sT1}, v16", f"v_subrev_u32 v16, s{sT1}, v16", "v_lshlrev_b32 v20, 1, v16", "v_cndmask_b32 v19, v17, v19, vcc",
         f"v_cmp_gt_u32 vcc, s{sT1}, v16", "v_mov_b32 v24, 0", "s_nop 0", "v_cndmask_b32 v20, v17, v20, vcc",
         f"s_lshl_b32 s{sQ}, s{sP}, 7", f"s_cmp_eq_u32 s{sIsA}, 0", f"s_cselect_b32 s{sT0}, 4096, 0", f"s_add_u32 s{sQ}, s{sQ}, s{sT0}", f"s_lshl_b32 s{sG}, s{sF0}, 1", f"s_mov_b32 s{sCnt}, 1024"])
    a.lab("g2_rcs")
    a.e([f"buffer_load_ushort v21, v18, {sr(sWQ,4)}, s{sQ} offen", f"buffer_load_ushort v22, v19, {sr(sWG,4)}, s{sG} offen", f"buffer_load_ushort v23, v20, {sr(sWU,4)}, s{sG} offen",
         f"s_add_u32 s{sQ}, s{sQ}, 6144", f"s_add_u32 s{sG}, s{sG}, 7168", "s_waitcnt vmcnt(0)", "v_or3_b32 v21, v21, v22, v23", "v_lshlrev_b32 v21, 16, v21", "v_add_f32 v24, v24, v21",
         f"s_sub_u32 s{sCnt}, s{sCnt}, 1", f"s_cmp_lg_u32 s{sCnt}, 0", "s_cbranch_scc1 g2_rcs"])
    a.e(csaddr(16) + ["ds_write_b32 v16, v24", "s_branch g2_rjoin"])
    a.lab("g2_rok")
    a.e(hload(16, 20, 24, 25))
    a.e("s_waitcnt vmcnt(0)")
    a.e(hsum(16, 20, 24))
    a.lab("g2_rjoin")
    a.e(["s_waitcnt lgkmcnt(0)", "s_barrier"])
    for v in range(3): a.e([f"s_cmp_eq_u32 s{sV}, {v}", f"s_cbranch_scc1 g2_rj{v}"])
    a.e("s_branch g2_rd3")
    for v in range(3):
        a.lab(f"g2_rj{v}"); a.e(f"s_branch g2_rd{v}")
    a.lab("g2_exit")
    a.e("s_endpgm")
    return kernel_desc(name, 256), f"; @launch kernel={name} grid=(256,1,1) block=(512,1,1) lds={G2_LDS}"
```
